```python
import torch

def _softmax(x, axis=-1):
    return torch.softmax(x, dim=axis)
def _gelu(x):
    return torch.nn.functional.gelu(x, approximate="tanh")
def _silu(x):
    return torch.nn.functional.silu(x)
def _sigmoid(x):
    return torch.sigmoid(x)
def _layernorm(x, axis=-1, eps=1e-5):
    m = x.mean(dim=axis, keepdim=True)
    v = x.var(dim=axis, keepdim=True, unbiased=False)
    return (x - m) / torch.sqrt(v + eps)
def _scatter_add(tgt, idx, src, axis=0):
    return tgt.clone().index_add_(axis, idx, src)
def _segment_sum(src, seg, n):
    out = torch.zeros((n,) + src.shape[1:], dtype=src.dtype)
    return out.index_add_(0, seg, src)
def _pad(x, pw):
    flat = tuple(v for pair in reversed(pw) for v in pair)
    return torch.nn.functional.pad(x, flat)

kernel_name = 'standalone__sliding_block_cached__sampling'

def setup_inputs():

    _w = (lambda a: (lambda t: t.to(torch.bfloat16) if t.is_floating_point() else t)(torch.as_tensor(a)))
    B, Sq, D = 8, 8, 448
    Hq, Hkv, Sk, Dh = 16, 8, 8192, 256
    assert Hq % Hkv == 0, (Hq, Hkv)
    return {
        "x": _w((lambda *s: torch.randn(*s, dtype=torch.bfloat16) * 0.8)(B, Sq, D)),
        "k_cache": _w((lambda *s: torch.randn(*s, dtype=torch.bfloat16) * 0.8)(B, Hkv, Sk, Dh)),
        "v_cache": _w((lambda *s: torch.randn(*s, dtype=torch.bfloat16) * 0.05)(B, Hkv, Sk, Dh)),
        "wq": _w((lambda *s: torch.randn(*s, dtype=torch.bfloat16) * 0.8)(D, Hq * Dh) * (D ** -0.5)),
        "wo": _w((lambda *s: torch.randn(*s, dtype=torch.bfloat16) * 0.05)(Hq * Dh, D) * ((Hq * Dh) ** -0.5)),
    }

def reference(x, k_cache, v_cache, wq, wo):
    B, Sq, D = x.shape
    Hq, Dh = 16, 256
    Hkv, Sk = k_cache.shape[1], k_cache.shape[2]
    W = min(4096, max(256, Sk // 4))
    rep = Hq // Hkv
    q = (lambda x, *d: x.permute(*d))((x @ wq).reshape(B, Sq, Hq, Dh), 0, 2, 1, 3)
    k = (lambda x, n, axis: torch.repeat_interleave(x, n, dim=axis))(k_cache[:, :, Sk - W:, :], rep, axis=1)
    v = (lambda x, n, axis: torch.repeat_interleave(x, n, dim=axis))(v_cache[:, :, Sk - W:, :], rep, axis=1)
    scores = torch.einsum("bhqd,bhkd->bhqk", q, k) * (Dh ** -0.5)
    p = _softmax(scores, axis=-1)
    o = torch.einsum("bhqk,bhkd->bhqd", p, v)
    return (lambda x, *d: x.permute(*d))(o, 0, 2, 1, 3).reshape(B, Sq, Hq * Dh) @ wo
```

```python
import re
_RV = re.compile(r'^(-|\|)?(abs\()?([vsa])(?:\[(\d+):(\d+)\]|(\d+))\)?\|?$')
def regs(op):
    op = op.strip()
    if op in ('vcc',): return [('s', 'vcc_lo'), ('s', 'vcc_hi')]
    if op in ('exec',): return [('s', 'exec_lo'), ('s', 'exec_hi')]
    if op in ('m0', 'vcc_lo', 'vcc_hi', 'exec_lo', 'exec_hi'): return [('s', op)]
    m = _RV.match(op)
    if not m: return []
    k = m.group(3)
    if m.group(6) is not None: return [(k, int(m.group(6)))]
    return [(k, i) for i in range(int(m.group(4)), int(m.group(5)) + 1)]
TRANS = ('v_exp_f32', 'v_log_f32', 'v_rcp_f32', 'v_rsq_f32', 'v_sqrt_f32', 'v_sin_f32', 'v_cos_f32')
class Ins:
    def __init__(self, text):
        self.text = text
        t = text.split(';')[0].strip()
        self.label = t.endswith(':')
        self.dir = t.startswith('.') or not t
        p = t.split(None, 1)
        self.mn = p[0] if p else ''
        ops = []
        if len(p) > 1:
            ops = [o.strip() for o in re.split(r',(?![^\[]*\])', p[1])]
            last = ops[-1].split()
            self.mods = last[1:]
            ops[-1] = last[0]
        else: self.mods = []
        self.ops = ops
        mn = self.mn
        self.kind = 'other'; self.w = []; self.r = []; self.C = []; self.AB = []; self.sdata = []
        R = [regs(o) for o in ops]
        flat = lambda a: [x for y in a for x in y]
        if self.label or self.dir: self.kind = 'none'
        elif mn.startswith('v_mfma'):
            self.kind = 'mfma'; self.w = R[0]; self.AB = R[1] + R[2]; self.C = R[3]; self.r = self.AB + self.C
        elif mn.startswith('v_'):
            self.kind = 'valu'; self.w = list(R[0]); self.r = flat(R[1:])
            if 'permlane' in mn and 'swap' in mn: self.w = R[0] + R[1]; self.r = R[0] + R[1]
            if mn.startswith('v_fmac') or mn.startswith('v_pk_fmac'): self.r += R[0]
            if mn.startswith('v_cmpx'): self.w += regs('exec')
            if mn.startswith('v_cndmask') and len(ops) == 3: self.r += regs('vcc')
            if '_co_' in mn: self.w += R[1]
        elif mn.startswith('buffer_load') or mn.startswith('global_load'):
            self.kind = 'vmem'
            if 'lds' in self.mods or '_lds_' in mn: self.r = flat(R) + regs('m0'); self.dma = True
            else: self.w = R[0]; self.r = flat(R[1:])
        elif mn.startswith('buffer_store'):
            self.kind = 'vmem'; self.r = flat(R); self.sdata = R[0] if len(R[0]) >= 3 else []
        elif mn.startswith('global_store'):
            self.kind = 'vmem'; self.r = flat(R); self.sdata = R[1] if len(R[1]) >= 3 else []
        elif mn.startswith('ds_read'):
            self.kind = 'ds'; self.w = R[0]; self.r = flat(R[1:])
        elif mn.startswith('ds_'):
            self.kind = 'ds'; self.r = flat(R)
        elif mn.startswith('s_'):
            self.kind = 'salu'
            if mn.startswith(('s_cmp', 's_cbranch', 's_branch', 's_waitcnt', 's_nop', 's_barrier', 's_sleep', 's_endpgm', 's_setprio', 's_bitcmp')):
                self.r = flat(R)
            else:
                self.w = list(R[0]) if R else []; self.r = flat(R[1:])
                if 'saveexec' in mn: self.w += regs('exec')
    def states(self):
        if self.kind == 'none': return 0
        if self.mn == 's_nop': return int(self.ops[0], 0) + 1
        return 1
def need(p, c):
    n = 0
    ov = lambda a, b: bool(set(a) & set(b))
    if p.kind == 'valu':
        vw = [x for x in p.w if x[0] in 'va']; sw = [x for x in p.w if x[0] == 's']
        if c.kind == 'mfma' and ov(vw, c.r): n = max(n, 2)
        if c.kind == 'mfma' and ov(sw, regs('exec')): n = max(n, 4)
        if c.kind == 'valu':
            if 'permlane' in c.mn and ov(vw, c.r): n = max(n, 2)
            if 'permlane' in c.mn and ov(sw, regs('exec')): n = max(n, 4)
            if c.mn.startswith(('v_readfirstlane', 'v_readlane')) and ov(vw, c.r): n = max(n, 1)
            if c.mn.startswith(('v_readfirstlane', 'v_readlane', 'v_writelane')) and ov(sw, regs('exec')): n = max(n, 4)
            if p.mn.startswith(TRANS) and not c.mn.startswith(TRANS) and ov(vw, c.r): n = max(n, 1)
            if ov(sw, c.r): n = max(n, 2)
            if any(m.startswith(('row_', 'quad_perm', 'wave_')) for m in c.mods):
                if ov(vw, c.r): n = max(n, 2)
                if ov(sw, regs('exec')): n = max(n, 5)
        if p.mn.startswith('v_dot'):
            if c.mn != p.mn and (ov(vw, c.r) or ov(vw, c.w)): n = max(n, 3)
            if c.mn == p.mn and ov(vw, regs(c.ops[1]) + regs(c.ops[2])): n = max(n, 3)
        if c.kind == 'vmem' and ov(sw, c.r): n = max(n, 5)
        if c.kind == 'salu' and ov(sw, c.r): n = max(n, 1)
    if p.kind == 'mfma':
        if c.kind == 'mfma':
            if ov(p.w, c.AB): n = max(n, 8)
            if ov(p.w, c.C) and p.w != c.C: n = max(n, 6)
            if ov(p.w, c.w) and p.w != c.C: n = max(n, 8)
        elif c.kind in ('valu', 'vmem', 'ds'):
            if ov(p.w, c.r) or ov(p.w, c.w): n = max(n, 8)
            if c.kind == 'valu' and ov(p.C, c.w): n = max(n, 3)
    if p.kind == 'salu' and ('s', 'm0') in p.w and c.kind == 'vmem' and ('s', 'm0') in c.r: n = max(n, 1)
    if p.kind == 'vmem' and p.sdata and ov(p.sdata, c.w): n = max(n, 2)
    return n
class Emit:
    def __init__(self):
        self.L = []
        self.vm = []
    def __call__(self, text):
        for t in text.split('\n'):
            t = t.strip()
            if t: self._one(t)
    def _one(self, t):
        c = Ins(t)
        if c.kind != 'none':
            dist = 0; pad = 0
            for p in reversed(self.L):
                if dist >= 10: break
                k = need(p, c)
                if k > dist: pad = max(pad, k - dist)
                dist += p.states()
            if pad: self.L.append(Ins('s_nop %d' % (pad - 1)))
        self.L.append(c)
    def vmem(self, name, text, counted=True):
        self(text)
        if counted: self.vm.append(name)
    def wait(self, name, extra=''):
        i = len(self.vm) - 1 - self.vm[::-1].index(name)
        n = len(self.vm) - 1 - i
        assert n < 64
        self('s_waitcnt vmcnt(%d)%s' % (n, extra))
    def text(self): return '\n'.join(('' if (i.label or i.dir) else '    ') + i.text for i in self.L) + '\n'
```

```python
import sys, struct
from asmlib import Emit
KN = 'standalone__sliding_block_cached__sampling_kernel'

QIMG = 0
WOIMG = 8192
PIMG = 73728
WQIMG = 90112
XIMG = WQIMG + 57344
CN = XIMG + 14336
XCH = WQIMG
MX = XCH + 16384
AL = MX + 512
OB = AL + 512
FIN = OB + 8704
LDS = 163840
OBS = 528
EOFF = 0
SOFF = 4096
NOFF = 1312 * 1024
XOFF = 24 * 1024
QOFF = 32 * 1024
OOFF = 288 * 1024
HOFF = 800 * 1024

def f2u(x): return struct.unpack('<I', struct.pack('<f', x))[0]

def gen(D=3, stamps=False, polK='nt', polW='nt', s_wq=(3, 4, 5, 6, 7, 8, 9, 2, 2), s_b0=14, s_qpoll=23, s_qchk=26, s_b1=28,
        s_tiles=(28, 29, 30, 31, 32, 33, 34), s_b2p=39, s_spoll=47, s_wo=(63,) * 8, s_woa=56, s_wotr=60,
        rotk=True, rotb=True, dep=None, sleep=2, prefetch=True, osleep=0, st_slots=None, skipwq=False, skipwo=False,
        dbgst=False, amp=None, amp_wg=0, amp_f=10, polHS='sc1', polHL='sc1', polOS='sc1', polOL='sc1', tailst=False, drain=True, split=True, xcdaware=True, s_qproj=15, s_soft=37, skipx=False, polX='', s_xi=9, perm=(14, 17, 16, 12, 15, 13), lin=(43, 35, 28, 6, 9, 47, 20, 26), hshift=14, s_pre1=63, s_pre2=None, drain1=True, drain2=True, boostA=tuple(range(10, 40)), boostB=(), polNear='', wbl2=None, s_xi2=None, outpre=None, wo_late=True, polWo='', polP2='sc1', polP1='sc1', odelay=0, hint=0, hdelay=0, hsleep=0, boostC=(), cmask=4, fake=0, qmap=0x37546210, usedot=False, rounds=True, mretry=True, fin2=False, pkx=True, mretry2=False, farset=(), s_clean=31, bshift=0, wosplit=False, D0=None, nocomp=False, xpre=False, wqpre=False, qwb=0):
    e = Emit()
    dep = dep or {}
    D0 = D0 or D
    nst = [0]
    def stamp(force=False):
        if stamps and (force or st_slots is None):
            assert nst[0] < 14
            e('s_memrealtime s[%d:%d]' % (72 + 2 * nst[0], 73 + 2 * nst[0])); nst[0] += 1
    hdr = []
    hdr.append('; @launch grid=(256,1,1) block=(512,1,1) lds=%d' % LDS)
    hdr.append("""; ---------------------------------------------------------------------------------------------
;
; ---------------------------------------------------------------------------------------------""")
    hdr.append('.amdgcn_target "amdgcn-amd-amdhsa--gfx950"')
    hdr.append('.text'); hdr.append('.globl ' + KN); hdr.append('.p2align 8'); hdr.append('.type %s,@function' % KN); hdr.append(KN + ':')
    stamp(True)
    e('s_cmp_ge_u32 s2, 256'); e('s_cbranch_scc1 L_end')
    e('s_load_dwordx16 s[4:19], s[0:1], 0')
    if prefetch:
        e('s_getpc_b64 s[60:61]')
        e('L_pc:')
        e('v_lshlrev_b32 v9, 5, v0')
        e('v_min_u32 v9, L_end-L_pc, v9')
        e.vmem('pf', 'global_load_dword v8, v9, s[60:61]')
    e('v_and_b32 v1, 63, v0')
    e('v_lshrrev_b32 v10, 6, v0')
    e('s_and_b32 s52, s2, 7')
    e('s_lshr_b32 s54, s2, 3')
    e('v_readfirstlane_b32 s55, v10')
    e('s_and_b32 s53, s54, 3')
    e('s_lshr_b32 s54, s54, 2')
    e('v_bfe_u32 v10, v1, 1, 3'); e('v_lshrrev_b32 v11, 4, v1'); e('v_and_b32 v12, 1, v1')
    e('v_lshlrev_b32 v2, 9, v10'); e('v_lshl_add_u32 v2, v11, 5, v2'); e('v_lshl_add_u32 v2, v12, 4, v2')
    e('s_lshl_b32 s62, s54, 25'); e('s_lshl_b32 s63, s52, 22'); e('s_add_u32 s62, s62, s63'); e('s_add_u32 s62, s62, 0x300000')
    e('s_lshl_b32 s63, s53, 18'); e('s_add_u32 s62, s62, s63')
    def spread(x, bits): return sum(((x >> i) & 1) << b for i, b in enumerate(bits))
    if lin is not None:
        e('s_mov_b32 s64, 0')
        for i in range(8):
            if lin[i]:
                e('s_bitcmp1_b32 s2, %d' % i); e('s_cselect_b32 s63, 0x%x, 0' % (lin[i] << 12)); e('s_xor_b32 s64, s64, s63')
    else:
        e('s_add_u32 s64, s2, 1'); e('s_mul_i32 s64, s64, 0x9E3779B1'); e('s_lshr_b32 s64, s64, %d' % hshift); e('s_and_b32 s64, s64, 0x3f000')
    e('s_mov_b32 s65, s64')
    for i in range(3):
        e('s_bfe_u32 s63, s55, 0x%x' % ((1 << 16) | i)); e('s_lshl_b32 s63, s63, %d' % perm[3 + i]); e('s_xor_b32 s65, s65, s63')
    e('s_mov_b32 s22, 0x40000'); e('s_mov_b32 s23, 0x20000')
    e('s_waitcnt lgkmcnt(0)')
    e('s_add_u32 s20, s6, s62'); e('s_addc_u32 s21, s7, 0')
    stamp()
    def kload(n):
        tau, cg = n >> 2, n & 3
        if cg == 0: e('s_xor_b32 s66, s65, %d' % spread(tau, perm[0:3]))
        r = 128 + 4 * n
        e.vmem('S%d' % n, 'buffer_load_dwordx4 v[%d:%d], v2, s[20:23], s66 offen offset:%d %s' % (r, r + 3, cg * 128, polK))
    def vload(v):
        beta, i = v >> 3, v & 7
        e('s_xor_b32 s66, s68, %d' % (spread(i, perm[0:3]) | spread(beta, perm[3:5])))
        r = 128 + 4 * v
        e.vmem('S%d' % (32 + v), 'buffer_load_dwordx4 v[%d:%d], v3, s[24:27], s66 offen %s' % (r, r + 3, polK))
    for n in range(D0): kload(n)
    e('s_lshr_b32 s63, s54, 1')
    e('s_and_b32 s61, s54, 1'); e('s_lshl_b32 s61, s61, 2'); e('s_add_u32 s61, s61, s53')
    e('s_lshl_b32 s60, s61, 2'); e('s_lshr_b32 s1, 0x%x, s60' % qmap); e('s_and_b32 s1, s1, 7')
    e('s_lshl_b32 s60, s52, 10'); e('s_lshl_b32 s71, s1, 7'); e('s_add_u32 s60, s60, s71')
    e('s_add_u32 s28, s10, s60'); e('s_addc_u32 s29, s11, 0'); e('s_sub_u32 s30, %d, s60' % (448 * 8192)); e('s_mov_b32 s31, 0x20000')
    e('v_and_b32 v13, 7, v1'); e('v_bfe_u32 v14, v1, 4, 1'); e('v_lshlrev_b32 v14, 1, v14'); e('v_xor_b32 v13, v13, v14'); e('v_lshlrev_b32 v13, 4, v13')
    e('v_lshrrev_b32 v14, 3, v1')
    e('v_lshl_add_u32 v120, v14, 13, v13')
    e('s_and_b32 s60, s55, 1'); e('s_lshl_b32 s60, s60, 6')
    e('v_xor_b32 v120, s60, v120'); e('v_xor_b32 v121, 64, v120')
    e('s_mul_i32 s67, s55, %d' % (7 * 65536)); e('s_mul_i32 s69, s55, %d' % (7 * 1024))
    e('s_mul_i32 s60, s63, 14336'); e('s_add_u32 s32, s4, s60'); e('s_addc_u32 s33, s5, 0'); e('s_mov_b32 s34, 14336'); e('s_mov_b32 s35, 0x20000')
    e('v_lshlrev_b32 v4, 4, v1')
    if xpre:
        e('s_min_u32 s60, s55, 6'); e('s_lshl_b32 s60, s60, 11')
        for i in range(16): e('s_load_dword s0, s[32:33], s60 offset:%d' % (128 * i))
    if wqpre:
        e('s_mul_i32 s60, s63, %d' % (14 * 8192)); e('s_add_u32 s60, s60, s67')
        for i in range(14): e('s_load_dword s0, s[28:29], s60 offset:%d' % (8192 * i))
    def ev_wq(i):
        def f():
            if i < 7:
                e('s_add_u32 m0, s69, %d' % (WQIMG + i * 1024))
                e('s_add_u32 s60, s67, %d' % (i * 65536 + (0x40000000 if skipwq else 0)))
                e.vmem('WQ%d' % i, 'buffer_load_dwordx4 v%d, s[28:31], s60 offen %s lds' % (120 + (i & 1), polW))
            else:
                e('s_lshl_b32 s60, s55, 11'); e('s_add_u32 s71, s60, %d' % XIMG); e('s_cmp_eq_u32 s55, 7'); e('s_cselect_b32 m0, %d, s71' % PIMG)
                if skipx: e('s_mov_b32 s60, 0x40000000')
                e.vmem('WQ%d' % i, 'buffer_load_dwordx4 v4, s[32:35], s60 offen offset:%d %s lds' % ((i - 7) * 1024, polW if polX is None else polX))
        return f
    for i in range(9):
        if s_wq[i] < D0: ev_wq(i)()
    e('s_lshl_b32 s60, s63, 22'); e('s_add_u32 s44, s18, s60'); e('s_addc_u32 s45, s19, 0'); e('s_mov_b32 s46, 0x400000'); e('s_mov_b32 s47, 0x20000')
    e('s_load_dword s56, s[44:45], %d' % (EOFF))
    e('s_add_u32 s24, s8, s62'); e('s_addc_u32 s25, s9, 0'); e('s_mov_b32 s26, 0x40000'); e('s_mov_b32 s27, 0x20000')
    e('s_lshl_b32 s60, s54, 21'); e('s_add_u32 s40, s18, s60'); e('s_addc_u32 s41, s19, 0'); e('s_mov_b32 s42, 0x200000'); e('s_mov_b32 s43, 0x20000')
    e('s_lshl_b32 s60, s52, 9'); e('s_and_b32 s71, s53, 1'); e('s_lshl_b32 s71, s71, 7'); e('s_add_u32 s60, s60, s71'); e('s_mul_i32 s60, s60, 896')
    e('s_add_u32 s36, s12, s60'); e('s_addc_u32 s37, s13, 0'); e('s_sub_u32 s38, %d, s60' % (4096 * 896)); e('s_mov_b32 s39, 0x20000')
    e('s_mov_b32 s48, s14'); e('s_mov_b32 s49, s15'); e('s_mov_b32 s50, %d' % (28672 * 2)); e('s_mov_b32 s51, 0x20000')
    e('s_mov_b32 s57, 0x%08x' % f2u(1.4426950408889634 / 16)); e('s_mov_b32 s58, 0x05040100'); e('s_mov_b32 s59, 0x07060302')
    e('s_lshr_b32 s9, s55, 2')
    e('v_xor_b32 v10, s9, v10')
    e('v_lshlrev_b32 v3, 4, v10'); e('v_lshl_add_u32 v3, v11, 10, v3'); e('v_lshl_add_u32 v3, v12, 9, v3')
    e('s_lshl_b32 s68, s9, %d' % perm[5]); e('s_xor_b32 s68, s68, s64')
    e('s_and_b32 s10, s55, 3')
    e('s_lshl_b32 s71, s10, 7'); e('s_or_b32 s68, s68, s71')
    e('v_bfe_u32 v7, v1, 2, 2'); e('v_lshl_add_u32 v7, v11, 3, v7'); e('v_lshlrev_b32 v7, 7, v7')
    e('v_bfe_u32 v15, v1, 3, 2'); e('v_lshl_add_u32 v7, v15, 5, v7'); e('v_and_b32 v15, 3, v1'); e('v_lshl_add_u32 v7, v15, 3, v7')
    e('v_mul_u32_u24 v14, 896, v14'); e('v_add_u32 v5, v14, v13'); e('v_xor_b32 v13, 64, v13'); e('v_add_u32 v6, v14, v13')
    e('s_lshl_b32 s4, s55, 13'); e('s_add_u32 s4, s4, %d' % WOIMG)
    e('s_and_b32 s5, s54, 1')
    e('s_and_b32 s60, s61, 6'); e('s_add_u32 s60, s60, s9')
    e('s_bfe_u32 s6, s55, 0x10001'); e('s_lshl_b32 s6, s6, 2'); e('s_and_b32 s71, s55, 1'); e('s_add_u32 s6, s6, s71'); e('s_mul_i32 s6, s6, %d' % (64 * 896))
    e('s_lshl_b32 s71, s60, 7'); e('s_add_u32 s6, s6, s71')
    e('s_cmp_eq_u32 s60, 7'); e('s_cselect_b32 s6, 0x40000000, s6')
    e('s_lshl_b32 s11, s52, 2'); e('s_add_u32 s11, s11, s53')
    e('s_mov_b32 s3, 0x40000')
    e('s_getreg_b32 s16, hwreg(HW_REG_XCC_ID)'); e('s_and_b32 s16, s16, 15')
    e('s_cmp_eq_u32 s1, 3'); e('s_cselect_b32 s101, 1, 0'); e('s_bfe_u32 s60, s16, 0x%x' % (0x10000 | bshift)); e('s_lshl_b32 s60, s60, 1'); e('s_or_b32 s101, s101, s60')
    e('s_and_b32 s60, s55, %d' % cmask); e('s_cmp_eq_u32 s60, %d' % cmask); e('s_cselect_b32 s60, 4, 0'); e('s_or_b32 s101, s101, s60')
    e('s_mov_b32 s70, s16')
    e('v_mov_b32 v122, 0')
    e('v_lshlrev_b32 v15, 2, v1'); e('v_add_u32 v15, %d, v15' % CN); e('ds_write_b32 v15, v122')
    e('s_waitcnt lgkmcnt(0)'); e('s_barrier')
    e('s_add_u32 s56, s56, 1')
    e('s_lshl_b32 s60, s52, 7'); e('s_lshl_b32 s71, s61, 4'); e('s_add_u32 s60, s60, s71'); e('s_add_u32 s60, s60, %d' % XOFF)
    e('s_cmp_eq_u32 s55, 7'); e('s_cselect_b32 s60, s60, 0x40000000')
    e('v_mov_b32 v124, s16'); e('v_mov_b32 v125, s56'); e('s_mov_b64 exec, 1')
    e.vmem('XS', 'buffer_store_dwordx2 v[124:125], v122, s[44:47], s60 offen sc1')
    e('s_mov_b64 exec, -1')
    def ev_xi():
        e('v_and_b32 v126, 0x70, v4'); e('s_lshl_b32 s60, s52, 7'); e('s_add_u32 s60, s60, %d' % XOFF)
        e.vmem('XL', 'buffer_load_dwordx2 v[124:125], v126, s[44:47], s60 offen sc1')
    def ev_xc():
        e.wait('XL')
        e('v_cmp_ne_u32 vcc, s70, v124'); e('v_cmp_ne_u32 s[12:13], s56, v125'); e('s_or_b64 vcc, vcc, s[12:13]')
        e('s_cselect_b32 s16, 0, 1')
    e('s_lshl_b32 s14, s52, 2'); e('s_add_u32 s14, s14, s10'); e('s_lshl_b32 s14, s14, 2'); e('s_add_u32 s14, s14, s53'); e('s_lshl_b32 s14, s14, 1')
    e('s_add_u32 s14, s14, s9'); e('s_lshl_b32 s14, s14, 10'); e('s_add_u32 s14, s14, %d' % HOFF)
    far = []
    def xstore(name, texts):
        if name in farset:
            for i, t in enumerate(texts): e.vmem('%s%d' % (name, i), t + ' sc1')
            return
        k = len(far)
        e('s_cmp_eq_u32 s16, 1'); e('s_cbranch_scc0 L_far%d' % k)
        for i, t in enumerate(texts): e.vmem('%s%d' % (name, i), t + (' ' + polNear if xcdaware else ' sc1'))
        e('L_near%d:' % k)
        far.append(texts)

    def ev_clean():
        for i in range(4): e('v_mov_b32 v%d, -1' % (24 + i))
        xstore('CL', ['buffer_store_dwordx4 v[24:27], v4, s[40:43], s14 offen'])
    retry = []
    def arrive(k):
        if not split: return
        e('v_mov_b32 v14, %d' % (CN + 4 * k)); e('v_mov_b32 v9, 1'); e('s_mov_b64 exec, 1')
        e('ds_add_u32 v14, v9')
        e('s_mov_b64 exec, -1')
    def await_(k, reads):
        if not split:
            e('s_waitcnt lgkmcnt(0)'); e('s_barrier'); reads(); e('s_waitcnt lgkmcnt(0)'); return
        e('L_aw%d:' % k)
        e('s_sub_u32 s3, s3, 1'); e('s_cbranch_scc1 L_fin')
        e('v_mov_b32 v9, %d' % (CN + 4 * k))
        e('ds_read_b32 v9, v9')
        reads()
        e('s_waitcnt lgkmcnt(0)')
        e('v_readfirstlane_b32 s60, v9'); e('s_cmp_lt_u32 s60, 8'); e('s_cbranch_scc1 L_aw%d' % k)
    def poll_check(tags, name, loads):
        e('L_chk_%s:' % name)
        for t in tags: e('v_cmpx_eq_u32 vcc, s56, v%d' % t)
        e('s_cmp_eq_u64 exec, -1')
        e('s_mov_b64 exec, -1')
        e('s_cbranch_scc0 L_retry_%s' % name)
        retry.append((name, loads))

    def poll_check4(quads, name, loads):
        e('L_chk_%s:' % name)
        for k, q in enumerate(quads):
            e('v_perm_b32 v%d, v%d, v%d, s67' % (8 + 2 * k, q + 1, q)); e('v_perm_b32 v%d, v%d, v%d, s67' % (9 + 2 * k, q + 3, q + 2))
        for k, q in enumerate(quads): e('v_lshl_or_b32 v%d, v%d, 16, v%d' % (8 + 2 * k, 9 + 2 * k, 8 + 2 * k))
        for k, q in enumerate(quads): e('v_cmpx_eq_u32 vcc, s56, v%d' % (8 + 2 * k))
        e('s_cmp_eq_u64 exec, -1')
        e('s_mov_b64 exec, -1')
        e('s_cbranch_scc0 L_retry_%s' % name)
        retry.append((name, loads))

    def ev_b0():
        e.wait('WQ%d' % max(range(9), key=lambda i: (s_wq[i], i))); (e.wait('CL0') if not s_clean else None); arrive(0)
        if not split: e('s_barrier')
        stamp()
    def ev_qproj():
        e('s_mov_b32 s17, 0x40000000')
        e('s_cmp_ge_u32 s55, 4'); e('s_cbranch_scc1 L_noq')
        e('s_lshl_b32 s60, s55, 5'); e('v_xor_b32 v12, s60, v7'); e('v_add_u32 v12, %d, v12' % WQIMG)
        e('v_and_b32 v13, 15, v1'); e('v_mul_u32_u24 v13, 896, v13'); e('v_lshrrev_b32 v14, 4, v1'); e('v_lshl_add_u32 v13, v14, 4, v13'); e('v_add_u32 v13, %d, v13' % XIMG)
        def rd():
            for kb in range(14):
                r = 16 + 8 * kb
                e('ds_read_b64_tr_b16 v[%d:%d], v12 offset:%d' % (r, r + 1, kb * 4096))
                e('ds_read_b64_tr_b16 v[%d:%d], v12 offset:%d' % (r + 2, r + 3, kb * 4096 + 512))
                e('ds_read_b128 v[%d:%d], v13 offset:%d' % (r + 4, r + 7, kb * 64))
        if split: await_(0, rd)
        else: rd(); e('s_waitcnt lgkmcnt(0)')
        for kb in range(14):
            r = 16 + 8 * kb
            e('v_mfma_f32_16x16x32_bf16 v[8:11], v[%d:%d], v[%d:%d], %s' % (r, r + 3, r + 4, r + 7, 'v[8:11]' if kb else '0'))
        e('v_bfe_u32 v12, v1, 3, 1'); e('v_lshlrev_b32 v12, 11, v12'); e('v_lshl_add_u32 v12, v14, 7, v12')
        e('v_and_b32 v13, 7, v1'); e('v_lshl_add_u32 v12, v13, 4, v12')
        e('s_lshl_b32 s60, s52, 3'); e('s_add_u32 s60, s60, s1'); e('s_lshl_b32 s60, s60, 12'); e('s_lshl_b32 s71, s55, 9'); e('s_add_u32 s60, s60, s71'); e('s_add_u32 s17, s60, %d' % QOFF)
        e('v_mov_b32 v19, s56'); e('v_mov_b32 v18, 0')
        e('v_cvt_pk_bf16_f32 v16, v8, v9'); e('v_cvt_pk_bf16_f32 v17, v10, v11')
        e('L_noq:')
        xstore('QST', ['buffer_store_dwordx4 v[16:19], v12, s[44:47], s17 offen'])
        stamp()
    def qloads(cnt=True):
        e('s_lshl_b32 s60, s52, 3'); e('s_add_u32 s60, s60, s55'); e('s_lshl_b32 s60, s60, 12'); e('s_and_b32 s71, s54, 1'); e('s_lshl_b32 s71, s71, 11')
        e('s_add_u32 s60, s60, s71'); e('s_add_u32 s60, s60, %d' % QOFF)
        e.vmem('QP0', 'buffer_load_dwordx4 v[16:19], v4, s[44:47], s60 offen sc1', cnt)
        e.vmem('QP1', 'buffer_load_dwordx4 v[20:23], v4, s[44:47], s60 offen offset:1024 sc1', cnt)
    def ev_qchk():
        e('v_bfe_u32 v12, v1, 4, 1'); e('v_lshlrev_b32 v12, 10, v12'); e('v_lshrrev_b32 v13, 5, v1'); e('v_lshl_add_u32 v12, v13, 8, v12')
        e('v_and_b32 v13, 7, v1'); e('v_lshl_add_u32 v12, v13, 4, v12'); e('v_and_b32 v13, 8, v1'); e('v_add_u32 v12, v12, v13')
        e('s_lshl_b32 s60, s10, 11'); e('s_lshl_b32 s71, s9, 7'); e('s_add_u32 s60, s60, s71'); e('s_add_u32 s60, s60, %d' % QIMG)
        e('v_add_u32 v12, s60, v12')
        e.wait('QP1')
        poll_check([19, 23], 'q', lambda: qloads(False))
        e('ds_write_b64 v12, v[16:17]'); e('ds_write_b64 v12, v[20:21] offset:512')
        arrive(1)
        stamp()
    def ev_b1():
        await_(1, lambda: [e('ds_read_b128 v[%d:%d], v4 offset:%d' % (96 + 4 * f, 99 + 4 * f, QIMG + f * 1024)) for f in range(8)])
        stamp()
    def qk_mfma(tau):
        a = 64 + 8 * (tau & 1)
        e.wait('S%d' % (4 * tau + 3))
        for cg in range(4):
            k = 128 + 16 * tau + 4 * cg
            for c in range(2):
                q = 96 + 4 * (2 * cg + c)
                e('v_mfma_f32_16x16x32_bf16 v[%d:%d], v[%d:%d], v[%d:%d], %s' % (a + 4 * c, a + 4 * c + 3, k, k + 3, q, q + 3, ('v[%d:%d]' % (a + 4 * c, a + 4 * c + 3)) if cg else '0'))
    def qk_fin(tau):
        a = 64 + 8 * (tau & 1)
        e('v_add_f32 v%d, v%d, v%d' % (80 + tau, a + 0, a + 5))
        e('v_add_f32 v%d, v%d, v%d' % (88 + tau, a + 2, a + 7))
        if rounds:
            e('v_cvt_pk_bf16_f32 v%d, v%d, v%d' % (88 + tau, 80 + tau, 88 + tau))
            e('v_lshlrev_b32 v%d, 16, v%d' % (80 + tau, 88 + tau)); e('v_and_b32 v%d, 0xffff0000, v%d' % (88 + tau, 88 + tau))
        if tau == 0: e('v_max_f32 v15, v80, v88')
        else: e('v_max3_f32 v15, v15, v%d, v%d' % (80 + tau, 88 + tau))
    def ev_tile(tau):
        def f():
            qk_mfma(tau)
            if tau: qk_fin(tau - 1)
        return f
    def ev_max():
        qk_mfma(7); qk_fin(6)
        e('v_and_b32 v12, 15, v1'); e('v_lshlrev_b32 v12, 5, v12'); e('s_lshl_b32 s60, s55, 2'); e('s_add_u32 s60, s60, %d' % MX)
        e('v_add_u32 v13, s60, v12'); e('v_add_u32 v12, %d, v12' % MX)
        qk_fin(7)
        e('v_mov_b32 v14, v15'); e('v_permlane32_swap_b32 v14, v15'); e('v_max_f32 v15, v14, v15')
        e('v_mov_b32 v14, v15'); e('v_permlane16_swap_b32 v14, v15'); e('v_max_f32 v15, v14, v15')
        e('ds_write_b32 v13, v15')
        arrive(2)
    def ev_soft():
        e('s_lshl_b32 s60, s55, 11'); e('s_add_u32 s60, s60, %d' % PIMG); e('v_add_u32 v13, s60, v4')
        await_(2, lambda: (e('ds_read_b128 v[64:67], v12'), e('ds_read_b128 v[68:71], v12 offset:16')))
        e('v_max3_f32 v15, v64, v65, v66'); e('v_max3_f32 v14, v67, v68, v69'); e('v_max3_f32 v15, v15, v70, v71'); e('v_max_f32 v15, v14, v15')
        e('v_mul_f32 v120, s57, v15')
        for i in range(16): e('v_fma_f32 v%d, v%d, s57, -v120' % (80 + i, 80 + i))
        for i in range(16): e('v_exp_f32 v%d, v%d' % (80 + i, 80 + i))
        for u in range(2):
            for t in range(4): e('v_cvt_pk_bf16_f32 v%d, v%d, v%d' % (16 + 4 * u + t, 80 + 8 * u + 2 * t, 81 + 8 * u + 2 * t))
        e('ds_write_b128 v13, v[16:19]'); e('ds_write_b128 v13, v[20:23] offset:1024')
        if s_clean: e.wait('CL0')
        arrive(3)
        stamp()
    def ev_b2p():
        e('s_lshl_b32 s60, s9, 13'); e('s_add_u32 s60, s60, %d' % PIMG); e('v_add_u32 v12, s60, v4')
        await_(3, lambda: [e('ds_read_b128 v[%d:%d], v%d offset:%d' % (80 + 8 * b_ + 4 * h, 83 + 8 * b_ + 4 * h, 12, b_ * 2048 + h * 1024)) for b_ in range(4) for h in range(2)])
        e('s_mov_b32 s17, 0x40000000')
        e('s_cmp_lg_u32 s10, 0'); e('s_cbranch_scc1 L_nost')
        for i in range(4): e('v_mov_b32 v%d, 0x3f803f80' % (12 + i))
        for f in range(8):
            e('v_mfma_f32_16x16x32_bf16 v[8:11], v[12:15], v[%d:%d], %s' % (80 + 4 * f, 83 + 4 * f, 'v[8:11]' if f else '0'))
        e('s_lshl_b32 s60, s11, 9'); e('s_lshl_b32 s71, s9, 8'); e('s_add_u32 s60, s60, s71'); e('s_add_u32 s17, s60, %d' % SOFF)
        e('v_mov_b32 v8, v120'); e('v_mov_b32 v11, s56')
        e('L_nost:')
        e('s_mov_b64 exec, 0xffff')
        xstore('SST', ['buffer_store_dwordx4 v[8:11], v4, s[40:43], s17 offen'])
        e('s_mov_b64 exec, -1')
        stamp()
    def sloads(cnt=False):
        e('s_lshl_b32 s60, s52, 11'); e('s_add_u32 s60, s60, %d' % SOFF)
        e('s_cmp_eq_u32 s55, 7'); e('s_cselect_b32 s60, s60, 0x40000000')
        e.vmem('SP0', 'buffer_load_dwordx4 v[8:11], v4, s[40:43], s60 offen sc1', cnt)
        if s_clean:
            e('s_xor_b32 s71, s5, 1'); e('s_lshl_b32 s71, s71, 21'); e('s_add_u32 s71, s71, s60'); e('v_and_b32 v127, 7, v1'); e('v_lshlrev_b32 v127, 8, v127')
            e.vmem('SP2', 'buffer_load_dword v127, v127, s[44:47], s71 offen offset:12 sc1', cnt)
        e.vmem('SP1', 'buffer_load_dwordx4 v[12:15], v4, s[40:43], s60 offen offset:1024 sc1', cnt)
    def ev_spoll():
        sloads(True)
    def ev_schk():
        e.wait('SP1')
        e('s_cmp_lg_u32 s55, 7'); e('s_cbranch_scc1 L_nosc')
        poll_check([11, 15] + ([127] if s_clean else []), 's', sloads)
        e('v_max_f32 v10, v8, v12')
        e('v_mov_b32 v11, v10'); e('v_permlane32_swap_b32 v11, v10'); e('v_max_f32 v10, v10, v11')
        e('v_mov_b32 v11, v10'); e('v_permlane16_swap_b32 v11, v10'); e('v_max_f32 v10, v10, v11')
        e('v_sub_f32 v8, v8, v10'); e('v_sub_f32 v12, v12, v10'); e('v_sub_f32 v14, v120, v10')
        e('v_exp_f32 v8, v8'); e('v_exp_f32 v12, v12'); e('v_exp_f32 v14, v14')
        e('v_mul_f32 v9, v8, v9'); e('v_fmac_f32 v9, v12, v13')
        e('v_mov_b32 v11, v9'); e('v_permlane32_swap_b32 v11, v9'); e('v_add_f32 v9, v9, v11')
        e('v_mov_b32 v11, v9'); e('v_permlane16_swap_b32 v11, v9'); e('v_add_f32 v9, v9, v11')
        e('v_rcp_f32 v9, v9')
        e('v_and_b32 v8, 15, v1'); e('v_lshlrev_b32 v8, 2, v8'); e('v_add_u32 v8, %d, v8' % AL)
        e('v_mul_f32 v9, v9, v14')
        e('ds_write_b32 v8, v9')
        e('L_nosc:')
        stamp()
    def pv(beta):
        vb = 128 + 32 * beta
        e.wait('S%d' % (32 + 8 * beta + 7))
        for j in range(8):
            p, hi = j >> 1, j & 1
            f = 112 + 4 * (j & 1)
            for t in range(4):
                e('v_perm_b32 v%d, v%d, v%d, s%d' % (f + t, vb + 4 * (2 * t + 1) + p, vb + 4 * (2 * t) + p, 59 if hi else 58))
            for h in range(2):
                a = 16 + 8 * j + 4 * h
                b_ = 80 + 8 * beta + 4 * h
                e('v_mfma_f32_16x16x32_bf16 v[%d:%d], v[%d:%d], v[%d:%d], %s' % (a, a + 3, f, f + 3, b_, b_ + 3, ('v[%d:%d]' % (a, a + 3)) if beta else '0'))
    def ev_wo(n):
        def f():
            e('s_add_u32 m0, s4, %d' % (n * 1024))
            e('s_add_u32 s60, s6, %d' % (8 * n * 896 + (0x20000000 if skipwo else 0)))
            e.vmem('WO%d' % n, 'buffer_load_dwordx4 v%d, s[36:39], s60 offen %s lds' % (5 + (n & 1), polWo if polWo is not None else polW))
        return f
    def ev_woa():
        e.wait('WO7'); arrive(4)
    def wotr():
        e('s_lshl_b32 s60, s9, 15'); e('s_add_u32 s60, s60, %d' % WOIMG); e('s_lshl_b32 s71, s10, 5')
        e('v_xor_b32 v10, s71, v126'); e('v_add_u32 v10, s60, v10')
        def rd():
            for ks in range(8):
                r = 128 + 4 * ks
                e('ds_read_b64_tr_b16 v[%d:%d], v10 offset:%d' % (r, r + 1, ks * 4096))
                e('ds_read_b64_tr_b16 v[%d:%d], v10 offset:%d' % (r + 2, r + 3, ks * 4096 + 512))
        return rd
    def ev_paddr():
        e('s_lshl_b32 s15, s52, 1'); e('s_and_b32 s60, s53, 1'); e('s_add_u32 s15, s15, s60')
        e('s_lshl_b32 s7, s15, 9')
        e('s_lshl_b32 s15, s15, 14'); e('s_and_b32 s60, s55, 2'); e('s_lshl_b32 s60, s60, 12'); e('s_add_u32 s15, s15, s60')
        e('s_and_b32 s60, s55, 1'); e('s_lshl_b32 s60, s60, 10'); e('s_add_u32 s15, s15, s60')
        e('s_lshl_b32 s60, s9, 21'); e('s_add_u32 s15, s15, s60'); e('s_add_u32 s15, s15, %d' % HOFF); e('s_add_u32 s20, s15, 4096')
        e('s_lshr_b32 s60, s53, 1'); e('s_lshl_b32 s60, s60, 3'); e('s_add_u32 s60, s60, s55'); e('s_lshl_b32 s60, s60, 14'); e('s_add_u32 s7, s7, s60'); e('s_add_u32 s7, s7, %d' % OOFF)

        if fin2: e('s_lshl_b32 s8, s11, 7'); e('s_add_u32 s8, s8, s55'); e('s_lshl_b32 s8, s8, 6'); e('s_add_u32 s8, s8, %d' % OOFF)
        else: e('s_lshl_b32 s8, s11, 3'); e('s_add_u32 s8, s8, s55'); e('s_lshl_b32 s8, s8, 10'); e('s_add_u32 s8, s8, %d' % OOFF)
        e('v_mov_b32 v126, v7')
    def ev_pre1():
        e('v_and_b32 v125, 7, v1'); e('v_lshlrev_b32 v125, 7, v125')
        e.vmem('PRE1', 'buffer_load_dword v127, v125, s[40:43], s14 offen %s' % polP1)
    def ev_wotr():
        if not wo_late: await_(4, wotr())
        e('v_lshrrev_b32 v13, 4, v1')
        e('s_lshl_b32 s60, s55, 11'); e('s_add_u32 s71, s60, %d' % XCH); e('v_add_u32 v2, s71, v4')
        e('s_xor_b32 s60, s60, 0x2000'); e('s_add_u32 s71, s60, %d' % XCH); e('v_add_u32 v196, s71, v4')
        e('v_and_b32 v14, 15, v1'); e('v_lshlrev_b32 v121, 2, v14'); e('v_add_u32 v121, %d, v121' % AL)
        e('v_mul_u32_u24 v12, %d, v14' % OBS)
        e('v_lshl_add_u32 v7, v13, 4, v12'); e('v_add_u32 v7, %d, v7' % OB)
        e('v_and_b32 v12, 7, v1'); e('v_mul_u32_u24 v12, %d, v12' % OBS)
        e('v_lshl_add_u32 v197, v13, 5, v12'); e('v_and_b32 v12, 8, v1'); e('v_lshl_add_u32 v197, v12, 5, v197')
        e('s_mul_i32 s60, s9, %d' % (8 * OBS)); e('s_and_b32 s71, s55, 2'); e('s_lshl_b32 s71, s71, 6'); e('s_add_u32 s60, s60, s71')
        e('s_and_b32 s71, s55, 1'); e('s_lshl_b32 s71, s71, 4'); e('s_add_u32 s60, s60, s71'); e('s_add_u32 s60, s60, %d' % OB)
        e('v_add_u32 v197, s60, v197')
        e('v_lshrrev_b32 v12, 5, v1'); e('v_and_b32 v0, 0x1f0, v4'); e('v_lshl_add_u32 v0, v12, 13, v0')
        for k in range(4): e('s_bfe_u32 s60, s56, 0x%x' % ((8 << 16) | (8 * k))); e('v_mov_b32 v%d, s60' % (192 + k))
        e('s_mov_b32 s65, 0xffffff00'); e('s_mov_b32 s67, 0x0c0c0400'); e('s_mov_b32 s63, 0x3f80'); e('s_mov_b32 s64, 0x3f800000')
        if qwb:
            e('s_lshl_b32 s21, s52, 3'); e('s_add_u32 s21, s21, s1'); e('s_lshl_b32 s21, s21, 12'); e('s_lshl_b32 s71, s55, 9'); e('s_add_u32 s21, s21, s71'); e('s_add_u32 s21, s21, %d' % QOFF)
            for i in range(4): e('v_mov_b32 v%d, s56' % (204 + i))
        e('s_lshr_b32 s60, s61, 1'); e('s_lshl_b32 s60, s60, 3'); e('s_add_u32 s60, s60, s55'); e('s_cmp_lt_u32 s60, 28'); e('s_cselect_b32 s12, 1, 0')
        e('s_lshl_b32 s60, s5, 5'); e('s_add_u32 s60, s60, s11'); e('s_cmp_lt_u32 s60, 56'); e('s_cselect_b32 s13, 1, 0')
        e('s_lshl_b32 s60, s60, 4'); e('s_lshr_b32 s61, s54, 1'); e('s_mul_i32 s61, s61, 14336'); e('s_add_u32 s61, s61, s60')
        if fin2:
            e('v_lshrrev_b32 v198, 2, v1'); e('v_and_b32 v15, 3, v1'); e('v_lshlrev_b32 v198, 9, v198'); e('v_lshl_add_u32 v198, v15, 4, v198')
            e('v_mul_u32_u24 v200, 896, v15'); e('v_lshl_add_u32 v200, v12, 2, v200')
            e('s_mul_i32 s60, s10, %d' % (4 * 896)); e('s_add_u32 s61, s61, s60'); e('s_lshl_b32 s60, s9, 3'); e('s_add_u32 s61, s61, s60')
        else:
            e('v_mul_u32_u24 v200, 896, v14'); e('v_lshl_add_u32 v200, v12, 2, v200'); e('v_bfe_u32 v15, v1, 4, 1'); e('v_lshl_add_u32 v200, v15, 3, v200')
            e('s_lshl_b32 s60, s55, 9'); e('s_add_u32 s60, s60, %d' % FIN); e('v_lshlrev_b32 v199, 3, v1'); e('v_add_u32 v198, s60, v199'); e('v_add_u32 v199, %d, v199' % FIN)
    ev = {}
    s_max = max(31 + D, s_tiles[-1] + 1)
    def at(slot, f): ev.setdefault(slot, []).append(f)
    for i in range(9):
        if s_wq[i] >= D0: at(s_wq[i], ev_wq(i))
    at(s_xi, ev_xi); at(s_xi + D + 1, ev_xc); at(s_clean or s_xi + D + 1, ev_clean); assert s_xi + D + 1 < (s_qproj if s_clean else s_b0)
    if s_xi2: at(s_xi2, ev_xi); at(s_xi2 + D + 2, ev_xc); assert s_max + 1 < s_xi2 and s_xi2 + D + 2 < 40
    at(s_b0, ev_b0); at(s_qproj if split else s_b0, ev_qproj); at(s_qpoll, qloads); at(s_qchk, ev_qchk); at(s_b1, ev_b1)
    for tau, sl in enumerate(s_tiles):
        if not nocomp: at(sl, ev_tile(tau))
    s_max = max(31 + D, s_tiles[-1] + 1)
    s_soft = s_soft or s_max + 1
    at(s_max, ev_max); at(s_soft, ev_soft); at(s_b2p, ev_b2p)
    assert s_b2p > s_soft > s_max
    for tau, sl in enumerate(s_tiles): assert sl < 32 + 4 * tau
    at(s_spoll, ev_spoll); at(s_spoll + D + 1, ev_schk)
    (at(max(39 + D, s_b2p + 1), lambda: pv(0)), at(47 + D, lambda: pv(1)), at(55 + D, lambda: pv(2))) if not nocomp else None
    if s_pre1: at(s_pre1, ev_pre1)
    for n in range(8): at(s_wo[n], ev_wo(n))
    if not wo_late:
        at(s_woa, ev_woa); assert s_wo[7] < s_woa < s_wotr and not (s_spoll <= s_woa <= s_spoll + D + 1)
    assert s_wotr > 55 + D and list(s_wo) == sorted(s_wo) and s_spoll + D + 1 < s_wotr and s_spoll > s_b2p
    at(s_wotr, ev_wotr)
    at(40, ev_paddr)
    def ev_outpre():
        e('s_mul_i32 s60, s54, 7168')
        e.vmem('OUTP', 'buffer_load_dword v127, v122, s[48:51], s60 offen')
    if outpre: at(outpre, lambda: (e('v_mov_b32 v122, 0'), ev_outpre()))
    for n in range(D0, 64):
        d = dep.get(n, D)
        e('; ---- slot %d' % n)
        m = (1 if n in boostA else 0) | (2 if n in boostB else 0) | (4 if n in boostC else 0)
        if m and n - d - 1 >= 0:
            e.wait('S%d' % (n - d - 1))
            e('s_and_b32 s60, s101, %d' % m); e('s_cbranch_scc1 L_bo%d' % n)
            e.wait('S%d' % (n - d))
            e('L_bo%d:' % n)
        elif n - d >= 0: e.wait('S%d' % (n - d))
        if st_slots and n in st_slots: stamp(True)
        if n < 32: kload(n)
        else: vload(n - 32)
        for f in ev.get(n, []): f()
    stamp(tailst)
    def hint_store():
        e('buffer_store_dword v203, v204, s[44:47], s69 offen sc1')
    def qwb_store():
        e('s_mov_b32 exec_hi, 0')
        e('buffer_store_dwordx4 v[204:207], v4, s[44:47], s21 offen sc1')
        e('s_mov_b32 exec_hi, -1')
    pv(3)
    if tailst: stamp(True)
    for j in range(8): e('v_add_f32 v%d, v%d, v%d' % (88 + j, 16 + 8 * j + 2, 16 + 8 * j + 7))
    e('ds_write_b128 v2, v[88:91]'); e('ds_write_b128 v2, v[92:95] offset:1024')
    for j in range(8): e('v_add_f32 v%d, v%d, v%d' % (80 + j, 16 + 8 * j, 16 + 8 * j + 5))
    if wo_late and not wosplit: e.wait('WO7')
    e('s_waitcnt lgkmcnt(0)'); e('s_barrier')
    e('ds_read_b128 v[96:99], v196'); e('ds_read_b128 v[100:103], v196 offset:1024'); e('ds_read_b32 v104, v121')
    e('s_waitcnt lgkmcnt(0)')
    if pkx:
        for j in range(0, 8, 2): e('v_pk_add_f32 v[%d:%d], v[%d:%d], v[%d:%d]' % (80 + j, 81 + j, 80 + j, 81 + j, 96 + j, 97 + j))
        for j in range(0, 8, 2): e('v_pk_mul_f32 v[%d:%d], v[%d:%d], v[104:105] op_sel_hi:[1,0]' % (80 + j, 81 + j, 80 + j, 81 + j))
    else:
        for j in range(8): e('v_add_f32 v%d, v%d, v%d' % (80 + j, 80 + j, 96 + j))
        for j in range(8): e('v_mul_f32 v%d, v104, v%d' % (80 + j, 80 + j))
    for j in range(4): e('v_cvt_pk_bf16_f32 v%d, v%d, v%d' % (88 + j, 80 + 2 * j, 81 + 2 * j))
    e('v_min_u32 v91, -2, v91')
    xstore('HS', ['buffer_store_dwordx4 v[88:91], v4, s[40:43], s14 offen'])
    stamp(tailst)
    if wo_late and not wosplit: wotr()()
    if drain1: e('s_waitcnt vmcnt(0)')
    stamp(tailst)
    HA = (('s15', 0), ('s15', 2048), ('s20', 0), ('s20', 2048))
    def hload(p): e('buffer_load_dwordx4 v[%d:%d], v4, s[44:47], %s offen offset:%d sc1' % (16 + 4 * p, 19 + 4 * p, HA[p][0], HA[p][1]))
    def hloads():
        for p in range(4): hload(p)
    hloads()
    if wo_late and wosplit:
        assert drain1
        arrive(4); await_(4, wotr())
    e('s_waitcnt vmcnt(0)')
    if tailst: stamp(True)
    e('L_chk_h:')
    e('v_max_u32 v8, v19, v23'); e('v_max3_u32 v8, v8, v27, v31')
    e('v_cmp_eq_u32 vcc, -1, v8'); e('s_cbranch_vccnz L_retry_h')
    def hretry():
        for p in range(4):
            e('v_cmp_eq_u32 vcc, -1, v%d' % (19 + 4 * p)); e('s_cbranch_vccz L_hs%d' % p)
            hload(p)
            e('L_hs%d:' % p)
    retry.append(('h', hretry if mretry else hloads))
    stamp(tailst)
    if qwb == 1: qwb_store()
    for k in range(4):
        t = 32 + 8 * k
        for p in range(4):
            e('v_lshlrev_b32 v%d, 16, v%d' % (t + 2 * p, 16 + 4 * p + k)); e('v_and_b32 v%d, 0xffff0000, v%d' % (t + 2 * p + 1, 16 + 4 * p + k))
        e('v_pk_add_f32 v[%d:%d], v[%d:%d], v[%d:%d]' % (t, t + 1, t, t + 1, t + 2, t + 3))
        e('v_pk_add_f32 v[%d:%d], v[%d:%d], v[%d:%d]' % (t + 4, t + 5, t + 4, t + 5, t + 6, t + 7))
        e('v_pk_add_f32 v[%d:%d], v[%d:%d], v[%d:%d]' % (t, t + 1, t, t + 1, t + 4, t + 5))
        e('v_cvt_pk_bf16_f32 v%d, v%d, v%d' % (64 + k, t, t + 1))
    e('ds_write_b128 v197, v[64:67]')
    e('s_waitcnt lgkmcnt(0)'); e('s_barrier')
    e('s_cmp_eq_u32 s12, 0'); e('s_cbranch_scc1 L_nopub')
    for ks in range(8): e('ds_read_b128 v[%d:%d], v7 offset:%d' % (16 + 4 * ks, 19 + 4 * ks, ks * 64))
    for ks in range(8):
        e('s_waitcnt lgkmcnt(%d)' % (0 if stamps else 7 - ks))
        r = 128 + 4 * ks
        e('v_mfma_f32_16x16x32_bf16 v[48:51], v[%d:%d], v[%d:%d], %s' % (r, r + 3, 16 + 4 * ks, 19 + 4 * ks, 'v[48:51]' if ks else '0'))
    for v in range(4): e('v_and_or_b32 v%d, v%d, s65, v%d' % (48 + v, 48 + v, 192 + v))
    e('buffer_store_dwordx4 v[48:51], v0, s[40:43], s7 offen %s' % polOS)
    e('L_nopub:')
    stamp(tailst)
    if drain2: e('s_waitcnt vmcnt(0)')
    if tailst: stamp(True)
    e('s_cmp_eq_u32 s13, 0'); e('s_cbranch_scc1 L_fin')
    def oloads():
        e('buffer_load_dwordx4 v[80:83], %s, s[40:43], s8 offen %s' % ('v198' if fin2 else 'v4', polOL))
    if odelay: e('s_sleep %d' % odelay)
    oloads()
    e('s_waitcnt vmcnt(0)')
    if tailst: stamp(True)
    e('L_chk_o:')
    e('v_perm_b32 v8, v81, v80, s67'); e('v_perm_b32 v9, v83, v82, s67'); e('v_lshl_or_b32 v8, v9, 16, v8')
    e('v_cmp_ne_u32 vcc, s56, v8'); e('s_cbranch_vccnz L_retry_o')
    def oretry():
        e('s_mov_b64 exec, vcc'); oloads(); e('s_mov_b64 exec, -1')
    retry.append(('o', oretry if mretry2 else oloads))
    if tailst: stamp(True)
    for r in range(4): e('v_and_b32 v%d, s65, v%d' % (80 + r, 80 + r))
    e('v_permlane32_swap_b32 v80, v82'); e('v_permlane32_swap_b32 v81, v83')
    e('v_add_f32 v16, v80, v82'); e('v_add_f32 v17, v81, v83')
    if fin2:
        e('v_mov_b32 v18, v16'); e('v_mov_b32 v19, v17')
        e('v_permlane16_swap_b32 v18, v16'); e('v_permlane16_swap_b32 v19, v17')
        e('v_add_f32 v16, v16, v18'); e('v_add_f32 v17, v17, v19')
        e('v_add_f32_dpp v16, v16, v16 row_ror:8 row_mask:0xf bank_mask:0xf'); e('v_add_f32_dpp v17, v17, v17 row_ror:8 row_mask:0xf bank_mask:0xf')
        e('v_add_f32_dpp v16, v16, v16 row_ror:4 row_mask:0xf bank_mask:0xf'); e('v_add_f32_dpp v17, v17, v17 row_ror:4 row_mask:0xf bank_mask:0xf')
        e('v_cvt_pk_bf16_f32 v16, v16, v17')
        e('s_mov_b32 exec_lo, 15'); e('s_mov_b32 exec_hi, 15')
        e('buffer_store_dword v16, v200, s[48:51], s61 offen')
        e('s_mov_b64 exec, -1')
        e('s_cmp_lg_u32 s55, 0'); e('s_cbranch_scc1 L_fin')
    else:
        e('ds_write_b64 v198, v[16:17]')
        e('s_waitcnt lgkmcnt(0)'); e('s_barrier')
        e('s_cmp_lg_u32 s55, 0'); e('s_cbranch_scc1 L_fin')
        for w in range(8): e('ds_read_b64 v[%d:%d], v199 offset:%d' % (16 + 2 * w, 17 + 2 * w, w * 512))
        e('s_waitcnt lgkmcnt(0)')
        for (a, b_) in ((16, 18), (20, 22), (24, 26), (28, 30), (16, 20), (24, 28), (16, 24)):
            e('v_add_f32 v%d, v%d, v%d' % (a, a, b_)); e('v_add_f32 v%d, v%d, v%d' % (a + 1, a + 1, b_ + 1))
        e('v_cvt_pk_bf16_f32 v16, v16, v17')
        e('buffer_store_dword v16, v200, s[48:51], s61 offen')
    e('s_and_b32 s60, s2, 63'); e('s_cmp_lg_u32 s60, 0'); e('s_cbranch_scc1 L_fin')
    e('v_mov_b32 v9, s56'); e('v_mov_b32 v8, %d' % EOFF)
    e('s_mov_b64 exec, 1')
    e('buffer_store_dword v9, v8, s[44:47], 0 offen sc1')
    e('s_mov_b64 exec, -1')
    e('L_fin:')
    if stamps:
        stamp(True)
        e('s_waitcnt lgkmcnt(0)')
        if amp:
            last = 72 + 2 * (nst[0] - 1)
            a0 = 72 + 2 * amp[0]; a1 = 72 + 2 * (amp[1] if amp[1] >= 0 else nst[0] - 1)
            e('s_cmp_lg_u32 s2, %d' % amp_wg); e('s_cbranch_scc1 L_noamp')
            e('s_cmp_lg_u32 s55, 0'); e('s_cbranch_scc1 L_noamp')
            e('s_sub_u32 s60, s%d, s%d' % (a1, a0)); e('s_mul_i32 s60, s60, %d' % amp_f); e('s_min_u32 s60, s60, 100000')
            e('L_amp:')
            e('s_memrealtime s[62:63]'); e('s_waitcnt lgkmcnt(0)'); e('s_sub_u32 s64, s62, s%d' % last); e('s_cmp_lt_u32 s64, s60'); e('s_cbranch_scc1 L_amp')
            e('L_noamp:')
            e('s_endpgm')
        e('s_lshl_b32 s60, s2, 3'); e('s_add_u32 s60, s60, s55'); e('s_lshl_b32 s60, s60, 7')
        e('s_add_u32 s18, s18, 0x20000000'); e('s_addc_u32 s19, s19, 0')
        e('v_mov_b32 v8, s60')
        e('s_getreg_b32 s60, hwreg(HW_REG_XCC_ID)')
        for i in range(28): e('v_mov_b32 v%d, s%d' % (16 + i, 72 + i) if 72 + i < 72 + 2 * nst[0] else 'v_mov_b32 v%d, 0' % (16 + i))
        e('v_mov_b32 v44, s100'); e('v_mov_b32 v45, s3'); e('v_mov_b32 v46, s60'); e('v_mov_b32 v47, 0')
        e('s_mov_b64 exec, 1')
        for i in range(8): e('global_store_dwordx4 v8, v[%d:%d], s[18:19] offset:%d' % (16 + 4 * i, 19 + 4 * i, 16 * i))
    e('s_endpgm')
    for k, (name, loads) in enumerate(retry):
        e('L_retry_%s:' % name)
        if stamps: e('s_add_u32 s100, s100, %d' % (1 << (8 * k)))
        e('s_sub_u32 s3, s3, 1'); e('s_cbranch_scc1 L_fin')
        sl_ = osleep if name in 'oh' else sleep
        if sl_: e('s_sleep %d' % sl_)
        loads()
        e('s_waitcnt vmcnt(0)')
        e('s_branch L_chk_%s' % name)
    for k, texts in enumerate(far):
        e('L_far%d:' % k)
        for t in texts: e(t + ' sc1')
        e('s_branch L_near%d' % k)
    e('L_end:')
    e('s_endpgm')
    tail = ['.section .rodata,"a"', '.p2align 6', '.amdhsa_kernel ' + KN,
            '  .amdhsa_next_free_vgpr 256', '  .amdhsa_next_free_sgpr 102', '  .amdhsa_accum_offset 256',
            '  .amdhsa_group_segment_fixed_size 0', '  .amdhsa_kernarg_size 64', '  .amdhsa_user_sgpr_count 2',
            '  .amdhsa_user_sgpr_kernarg_segment_ptr 1', '  .amdhsa_system_sgpr_workgroup_id_x 1',
            '  .amdhsa_float_denorm_mode_32 3', '  .amdhsa_float_denorm_mode_16_64 3', '.end_amdhsa_kernel']
    txt = e.text()
    if stamps: txt = txt.replace('    s_mov_b32 s3, 0x40000\n', '    s_mov_b32 s3, 0x40000\n    s_mov_b32 s100, 0\n')
    return '\n'.join(hdr) + '\n' + txt + '\n'.join(tail) + '\n'

if __name__ == '__main__':
    cfgs = eval(open(sys.argv[1]).read())
    for n, c in cfgs.items():
        open(n + '.s', 'w').write(gen(**c))
    print(' '.join(n + '.s' for n in cfgs))
```

```python
import sys, struct
from asmlib import Emit
KN = 'standalone__sliding_block_cached__sampling_kernel'

QIMG = 0
WOIMG = 8192
PIMG = 73728
WQIMG = 90112
XIMG = WQIMG + 57344
CN = XIMG + 14336
XCH = WQIMG
MX = XCH + 16384
AL = MX + 512
OB = AL + 512
FIN = OB + 8704
LDS = 163840
OBS = 528
EOFF = 0
SOFF = 4096
NOFF = 1312 * 1024
XOFF = 24 * 1024
QOFF = 32 * 1024
OOFF = 288 * 1024
HOFF = 800 * 1024

def f2u(x): return struct.unpack('<I', struct.pack('<f', x))[0]

def gen(D=3, stamps=False, polK='nt', polW='nt', s_wq=(3, 4, 5, 6, 7, 8, 9, 2, 2), s_b0=14, s_qpoll=23, s_qchk=26, s_b1=28,
        s_tiles=(28, 29, 30, 31, 32, 33, 34), s_b2p=39, s_spoll=47, s_wo=(63,) * 8, s_woa=56, s_wotr=60,
        rotk=True, rotb=True, dep=None, sleep=2, prefetch=True, osleep=0, st_slots=None, skipwq=False, skipwo=False,
        dbgst=False, amp=None, amp_wg=0, amp_f=10, polHS='sc1', polHL='sc1', polOS='sc1', polOL='sc1', tailst=False, drain=True, split=True, xcdaware=True, s_qproj=15, s_soft=37, skipx=False, polX='', s_xi=9, perm=(14, 17, 16, 12, 15, 13), lin=(43, 35, 28, 6, 9, 47, 20, 26), hshift=14, s_pre1=63, s_pre2=None, drain1=True, drain2=True, boostA=tuple(range(10, 40)), boostB=(), polNear='', wbl2=None, s_xi2=None, outpre=None, wo_late=True, polWo='', polP2='sc1', polP1='sc1', odelay=0, hint=0, hdelay=0, hsleep=0, boostC=(), cmask=4, fake=0, qmap=0x37546210, usedot=False, rounds=True, mretry=True, fin2=False, pkx=True, mretry2=False, farset=(), s_clean=31, bshift=0, wosplit=False, D0=None, nocomp=False, xpre=False, wqpre=False, qwb=0, fb=None, fbq=None):
    e = Emit()
    dep = dep or {}
    D0 = D0 or D
    nst = [0]
    def stamp(force=False):
        if stamps and (force or st_slots is None):
            assert nst[0] < 14
            e('s_memrealtime s[%d:%d]' % (72 + 2 * nst[0], 73 + 2 * nst[0])); nst[0] += 1
    hdr = []
    hdr.append('; @launch grid=(256,1,1) block=(512,1,1) lds=%d' % LDS)
    hdr.append("""; ---------------------------------------------------------------------------------------------
;
; ---------------------------------------------------------------------------------------------""")
    hdr.append('.amdgcn_target "amdgcn-amd-amdhsa--gfx950"')
    hdr.append('.text'); hdr.append('.globl ' + KN); hdr.append('.p2align 8'); hdr.append('.type %s,@function' % KN); hdr.append(KN + ':')
    stamp(True)
    e('s_cmp_ge_u32 s2, 256'); e('s_cbranch_scc1 L_end')
    e('s_load_dwordx16 s[4:19], s[0:1], 0')
    if prefetch:
        e('s_getpc_b64 s[60:61]')
        e('L_pc:')
        e('v_lshlrev_b32 v9, 5, v0')
        e('v_min_u32 v9, L_end-L_pc, v9')
        e.vmem('pf', 'global_load_dword v8, v9, s[60:61]')
    e('v_and_b32 v1, 63, v0')
    e('v_lshrrev_b32 v10, 6, v0')
    e('s_and_b32 s52, s2, 7')
    e('s_lshr_b32 s54, s2, 3')
    e('v_readfirstlane_b32 s55, v10')
    e('s_and_b32 s53, s54, 3')
    e('s_lshr_b32 s54, s54, 2')
    e('v_bfe_u32 v10, v1, 1, 3'); e('v_lshrrev_b32 v11, 4, v1'); e('v_and_b32 v12, 1, v1')
    e('v_lshlrev_b32 v2, 9, v10'); e('v_lshl_add_u32 v2, v11, 5, v2'); e('v_lshl_add_u32 v2, v12, 4, v2')
    e('s_lshl_b32 s62, s54, 25'); e('s_lshl_b32 s63, s52, 22'); e('s_add_u32 s62, s62, s63'); e('s_add_u32 s62, s62, 0x300000')
    e('s_lshl_b32 s63, s53, 18'); e('s_add_u32 s62, s62, s63')
    def spread(x, bits): return sum(((x >> i) & 1) << b for i, b in enumerate(bits))
    if lin is not None:
        e('s_mov_b32 s64, 0')
        for i in range(8):
            if lin[i]:
                e('s_bitcmp1_b32 s2, %d' % i); e('s_cselect_b32 s63, 0x%x, 0' % (lin[i] << 12)); e('s_xor_b32 s64, s64, s63')
    else:
        e('s_add_u32 s64, s2, 1'); e('s_mul_i32 s64, s64, 0x9E3779B1'); e('s_lshr_b32 s64, s64, %d' % hshift); e('s_and_b32 s64, s64, 0x3f000')
    e('s_mov_b32 s65, s64')
    for i in range(3):
        e('s_bfe_u32 s63, s55, 0x%x' % ((1 << 16) | i)); e('s_lshl_b32 s63, s63, %d' % perm[3 + i]); e('s_xor_b32 s65, s65, s63')
    e('s_mov_b32 s22, 0x40000'); e('s_mov_b32 s23, 0x20000')
    e('s_waitcnt lgkmcnt(0)')
    e('s_add_u32 s20, s6, s62'); e('s_addc_u32 s21, s7, 0')
    stamp()
    def kload(n):
        tau, cg = n >> 2, n & 3
        if cg == 0: e('s_xor_b32 s66, s65, %d' % spread(tau, perm[0:3]))
        r = 128 + 4 * n
        e.vmem('S%d' % n, 'buffer_load_dwordx4 v[%d:%d], v2, s[20:23], s66 offen offset:%d %s' % (r, r + 3, cg * 128, polK))
    def vload(v):
        beta, i = v >> 3, v & 7
        e('s_xor_b32 s66, s68, %d' % (spread(i, perm[0:3]) | spread(beta, perm[3:5])))
        r = 128 + 4 * v
        e.vmem('S%d' % (32 + v), 'buffer_load_dwordx4 v[%d:%d], v3, s[24:27], s66 offen %s' % (r, r + 3, polK))
    for n in range(D0): kload(n)
    e('s_lshr_b32 s63, s54, 1')
    e('s_and_b32 s61, s54, 1'); e('s_lshl_b32 s61, s61, 2'); e('s_add_u32 s61, s61, s53')
    e('s_lshl_b32 s60, s61, 2'); e('s_lshr_b32 s1, 0x%x, s60' % qmap); e('s_and_b32 s1, s1, 7')
    e('s_lshl_b32 s60, s52, 10'); e('s_lshl_b32 s71, s1, 7'); e('s_add_u32 s60, s60, s71')
    e('s_add_u32 s28, s10, s60'); e('s_addc_u32 s29, s11, 0'); e('s_sub_u32 s30, %d, s60' % (448 * 8192)); e('s_mov_b32 s31, 0x20000')
    e('v_and_b32 v13, 7, v1'); e('v_bfe_u32 v14, v1, 4, 1'); e('v_lshlrev_b32 v14, 1, v14'); e('v_xor_b32 v13, v13, v14'); e('v_lshlrev_b32 v13, 4, v13')
    e('v_lshrrev_b32 v14, 3, v1')
    e('v_lshl_add_u32 v120, v14, 13, v13')
    e('s_and_b32 s60, s55, 1'); e('s_lshl_b32 s60, s60, 6')
    e('v_xor_b32 v120, s60, v120'); e('v_xor_b32 v121, 64, v120')
    e('s_mul_i32 s67, s55, %d' % (7 * 65536)); e('s_mul_i32 s69, s55, %d' % (7 * 1024))
    e('s_mul_i32 s60, s63, 14336'); e('s_add_u32 s32, s4, s60'); e('s_addc_u32 s33, s5, 0'); e('s_mov_b32 s34, 14336'); e('s_mov_b32 s35, 0x20000')
    e('v_lshlrev_b32 v4, 4, v1')
    if xpre:
        e('s_min_u32 s60, s55, 6'); e('s_lshl_b32 s60, s60, 11')
        for i in range(16): e('s_load_dword s0, s[32:33], s60 offset:%d' % (128 * i))
    if wqpre:
        e('s_mul_i32 s60, s63, %d' % (14 * 8192)); e('s_add_u32 s60, s60, s67')
        for i in range(14): e('s_load_dword s0, s[28:29], s60 offset:%d' % (8192 * i))
    def ev_wq(i):
        def f():
            if i < 7:
                e('s_add_u32 m0, s69, %d' % (WQIMG + i * 1024))
                e('s_add_u32 s60, s67, %d' % (i * 65536 + (0x40000000 if skipwq else 0)))
                e.vmem('WQ%d' % i, 'buffer_load_dwordx4 v%d, s[28:31], s60 offen %s lds' % (120 + (i & 1), polW))
            else:
                e('s_lshl_b32 s60, s55, 11'); e('s_add_u32 s71, s60, %d' % XIMG); e('s_cmp_eq_u32 s55, 7'); e('s_cselect_b32 m0, %d, s71' % PIMG)
                if skipx: e('s_mov_b32 s60, 0x40000000')
                e.vmem('WQ%d' % i, 'buffer_load_dwordx4 v4, s[32:35], s60 offen offset:%d %s lds' % ((i - 7) * 1024, polW if polX is None else polX))
        return f
    for i in range(9):
        if s_wq[i] < D0: ev_wq(i)()
    e('s_lshl_b32 s60, s63, 22'); e('s_add_u32 s44, s18, s60'); e('s_addc_u32 s45, s19, 0'); e('s_mov_b32 s46, 0x400000'); e('s_mov_b32 s47, 0x20000')
    e('s_load_dword s56, s[44:45], %d' % (EOFF))
    e('s_add_u32 s24, s8, s62'); e('s_addc_u32 s25, s9, 0'); e('s_mov_b32 s26, 0x40000'); e('s_mov_b32 s27, 0x20000')
    e('s_lshl_b32 s60, s54, 21'); e('s_add_u32 s40, s18, s60'); e('s_addc_u32 s41, s19, 0'); e('s_mov_b32 s42, 0x200000'); e('s_mov_b32 s43, 0x20000')
    e('s_lshl_b32 s60, s52, 9'); e('s_and_b32 s71, s53, 1'); e('s_lshl_b32 s71, s71, 7'); e('s_add_u32 s60, s60, s71'); e('s_mul_i32 s60, s60, 896')
    e('s_add_u32 s36, s12, s60'); e('s_addc_u32 s37, s13, 0'); e('s_sub_u32 s38, %d, s60' % (4096 * 896)); e('s_mov_b32 s39, 0x20000')
    e('s_mov_b32 s48, s14'); e('s_mov_b32 s49, s15'); e('s_mov_b32 s50, %d' % (28672 * 2)); e('s_mov_b32 s51, 0x20000')
    e('s_mov_b32 s57, 0x%08x' % f2u(1.4426950408889634 / 16)); e('s_mov_b32 s58, 0x05040100'); e('s_mov_b32 s59, 0x07060302')
    e('s_lshr_b32 s9, s55, 2')
    e('v_xor_b32 v10, s9, v10')
    e('v_lshlrev_b32 v3, 4, v10'); e('v_lshl_add_u32 v3, v11, 10, v3'); e('v_lshl_add_u32 v3, v12, 9, v3')
    e('s_lshl_b32 s68, s9, %d' % perm[5]); e('s_xor_b32 s68, s68, s64')
    e('s_and_b32 s10, s55, 3')
    e('s_lshl_b32 s71, s10, 7'); e('s_or_b32 s68, s68, s71')
    e('v_bfe_u32 v7, v1, 2, 2'); e('v_lshl_add_u32 v7, v11, 3, v7'); e('v_lshlrev_b32 v7, 7, v7')
    e('v_bfe_u32 v15, v1, 3, 2'); e('v_lshl_add_u32 v7, v15, 5, v7'); e('v_and_b32 v15, 3, v1'); e('v_lshl_add_u32 v7, v15, 3, v7')
    e('v_mul_u32_u24 v14, 896, v14'); e('v_add_u32 v5, v14, v13'); e('v_xor_b32 v13, 64, v13'); e('v_add_u32 v6, v14, v13')
    e('s_lshl_b32 s4, s55, 13'); e('s_add_u32 s4, s4, %d' % WOIMG)
    e('s_and_b32 s5, s54, 1')
    e('s_and_b32 s60, s61, 6'); e('s_add_u32 s60, s60, s9')
    e('s_bfe_u32 s6, s55, 0x10001'); e('s_lshl_b32 s6, s6, 2'); e('s_and_b32 s71, s55, 1'); e('s_add_u32 s6, s6, s71'); e('s_mul_i32 s6, s6, %d' % (64 * 896))
    e('s_lshl_b32 s71, s60, 7'); e('s_add_u32 s6, s6, s71')
    e('s_cmp_eq_u32 s60, 7'); e('s_cselect_b32 s6, 0x40000000, s6')
    e('s_lshl_b32 s11, s52, 2'); e('s_add_u32 s11, s11, s53')
    e('s_mov_b32 s3, 0x40000')
    e('s_getreg_b32 s16, hwreg(HW_REG_XCC_ID)'); e('s_and_b32 s16, s16, 15')
    e('s_cmp_eq_u32 s1, 3'); e('s_cselect_b32 s101, 1, 0'); e('s_bfe_u32 s60, s16, 0x%x' % (0x10000 | bshift)); e('s_lshl_b32 s60, s60, 1'); e('s_or_b32 s101, s101, s60')
    e('s_and_b32 s60, s55, %d' % cmask); e('s_cmp_eq_u32 s60, %d' % cmask); e('s_cselect_b32 s60, 4, 0'); e('s_or_b32 s101, s101, s60')
    e('s_mov_b32 s70, s16')
    e('v_mov_b32 v122, 0')
    e('v_lshlrev_b32 v15, 2, v1'); e('v_add_u32 v15, %d, v15' % CN); e('ds_write_b32 v15, v122')
    e('s_waitcnt lgkmcnt(0)'); e('s_barrier')
    e('s_add_u32 s56, s56, 1')
    e('s_lshl_b32 s60, s52, 7'); e('s_lshl_b32 s71, s61, 4'); e('s_add_u32 s60, s60, s71'); e('s_add_u32 s60, s60, %d' % XOFF)
    e('s_cmp_eq_u32 s55, 7'); e('s_cselect_b32 s60, s60, 0x40000000')
    e('v_mov_b32 v124, s16'); e('v_mov_b32 v125, s56'); e('s_mov_b64 exec, 1')
    e.vmem('XS', 'buffer_store_dwordx2 v[124:125], v122, s[44:47], s60 offen sc1')
    e('s_mov_b64 exec, -1')
    def ev_xi():
        e('v_and_b32 v126, 0x70, v4'); e('s_lshl_b32 s60, s52, 7'); e('s_add_u32 s60, s60, %d' % XOFF)
        e.vmem('XL', 'buffer_load_dwordx2 v[124:125], v126, s[44:47], s60 offen sc1')
    def ev_xc():
        e.wait('XL')
        e('v_cmp_ne_u32 vcc, s70, v124'); e('v_cmp_ne_u32 s[12:13], s56, v125'); e('s_or_b64 vcc, vcc, s[12:13]')
        e('s_cselect_b32 s16, 0, 1')
    e('s_lshl_b32 s14, s52, 2'); e('s_add_u32 s14, s14, s10'); e('s_lshl_b32 s14, s14, 2'); e('s_add_u32 s14, s14, s53'); e('s_lshl_b32 s14, s14, 1')
    e('s_add_u32 s14, s14, s9'); e('s_lshl_b32 s14, s14, 10'); e('s_add_u32 s14, s14, %d' % HOFF)
    far = []
    def xstore(name, texts):
        if name in farset:
            for i, t in enumerate(texts): e.vmem('%s%d' % (name, i), t + ' sc1')
            return
        k = len(far)
        e('s_cmp_eq_u32 s16, 1'); e('s_cbranch_scc0 L_far%d' % k)
        for i, t in enumerate(texts): e.vmem('%s%d' % (name, i), t + (' ' + polNear if xcdaware else ' sc1'))
        e('L_near%d:' % k)
        far.append(texts)

    def ev_clean():
        for i in range(4): e('v_mov_b32 v%d, -1' % (24 + i))
        xstore('CL', ['buffer_store_dwordx4 v[24:27], v4, s[40:43], s14 offen'])
    retry = []
    def arrive(k):
        if not split: return
        e('v_mov_b32 v14, %d' % (CN + 4 * k)); e('v_mov_b32 v9, 1'); e('s_mov_b64 exec, 1')
        e('ds_add_u32 v14, v9')
        e('s_mov_b64 exec, -1')
    def await_(k, reads):
        if not split:
            e('s_waitcnt lgkmcnt(0)'); e('s_barrier'); reads(); e('s_waitcnt lgkmcnt(0)'); return
        e('L_aw%d:' % k)
        if stamps: e('s_add_u32 s0, s0, %d' % (1 << (8 * min(k, 3))))
        e('s_sub_u32 s3, s3, 1'); e('s_cbranch_scc1 L_fin')
        e('v_mov_b32 v9, %d' % (CN + 4 * k))
        e('ds_read_b32 v9, v9')
        reads()
        e('s_waitcnt lgkmcnt(0)')
        e('v_readfirstlane_b32 s60, v9'); e('s_cmp_lt_u32 s60, 8'); e('s_cbranch_scc1 L_aw%d' % k)
    def poll_check(tags, name, loads):
        e('L_chk_%s:' % name)
        for t in tags: e('v_cmpx_eq_u32 vcc, s56, v%d' % t)
        e('s_cmp_eq_u64 exec, -1')
        e('s_mov_b64 exec, -1')
        e('s_cbranch_scc0 L_retry_%s' % name)
        retry.append((name, loads))

    def poll_check4(quads, name, loads):
        e('L_chk_%s:' % name)
        for k, q in enumerate(quads):
            e('v_perm_b32 v%d, v%d, v%d, s67' % (8 + 2 * k, q + 1, q)); e('v_perm_b32 v%d, v%d, v%d, s67' % (9 + 2 * k, q + 3, q + 2))
        for k, q in enumerate(quads): e('v_lshl_or_b32 v%d, v%d, 16, v%d' % (8 + 2 * k, 9 + 2 * k, 8 + 2 * k))
        for k, q in enumerate(quads): e('v_cmpx_eq_u32 vcc, s56, v%d' % (8 + 2 * k))
        e('s_cmp_eq_u64 exec, -1')
        e('s_mov_b64 exec, -1')
        e('s_cbranch_scc0 L_retry_%s' % name)
        retry.append((name, loads))

    def ev_b0():
        e.wait('WQ%d' % max(range(9), key=lambda i: (s_wq[i], i))); (e.wait('CL0') if not s_clean else None); arrive(0)
        if not split: e('s_barrier')
        stamp()
    def ev_qproj():
        e('s_mov_b32 s17, 0x40000000')
        e('s_cmp_ge_u32 s55, 4'); e('s_cbranch_scc1 L_noq')
        e('s_lshl_b32 s60, s55, 5'); e('v_xor_b32 v12, s60, v7'); e('v_add_u32 v12, %d, v12' % WQIMG)
        e('v_and_b32 v13, 15, v1'); e('v_mul_u32_u24 v13, 896, v13'); e('v_lshrrev_b32 v14, 4, v1'); e('v_lshl_add_u32 v13, v14, 4, v13'); e('v_add_u32 v13, %d, v13' % XIMG)
        def rd():
            for kb in range(14):
                r = 16 + 8 * kb
                e('ds_read_b64_tr_b16 v[%d:%d], v12 offset:%d' % (r, r + 1, kb * 4096))
                e('ds_read_b64_tr_b16 v[%d:%d], v12 offset:%d' % (r + 2, r + 3, kb * 4096 + 512))
                e('ds_read_b128 v[%d:%d], v13 offset:%d' % (r + 4, r + 7, kb * 64))
        if split: await_(0, rd)
        else: rd(); e('s_waitcnt lgkmcnt(0)')
        for kb in range(14):
            r = 16 + 8 * kb
            e('v_mfma_f32_16x16x32_bf16 v[8:11], v[%d:%d], v[%d:%d], %s' % (r, r + 3, r + 4, r + 7, 'v[8:11]' if kb else '0'))
        e('v_bfe_u32 v12, v1, 3, 1'); e('v_lshlrev_b32 v12, 11, v12'); e('v_lshl_add_u32 v12, v14, 7, v12')
        e('v_and_b32 v13, 7, v1'); e('v_lshl_add_u32 v12, v13, 4, v12')
        e('s_lshl_b32 s60, s52, 3'); e('s_add_u32 s60, s60, s1'); e('s_lshl_b32 s60, s60, 12'); e('s_lshl_b32 s71, s55, 9'); e('s_add_u32 s60, s60, s71'); e('s_add_u32 s17, s60, %d' % QOFF)
        e('v_mov_b32 v19, s56'); e('v_mov_b32 v18, 0')
        e('v_cvt_pk_bf16_f32 v16, v8, v9'); e('v_cvt_pk_bf16_f32 v17, v10, v11')
        e('L_noq:')
        xstore('QST', ['buffer_store_dwordx4 v[16:19], v12, s[44:47], s17 offen'])
        stamp()
    def qloads(cnt=True):
        e('s_lshl_b32 s60, s52, 3'); e('s_add_u32 s60, s60, s55'); e('s_lshl_b32 s60, s60, 12'); e('s_and_b32 s71, s54, 1'); e('s_lshl_b32 s71, s71, 11')
        e('s_add_u32 s60, s60, s71'); e('s_add_u32 s60, s60, %d' % QOFF)
        e.vmem('QP0', 'buffer_load_dwordx4 v[16:19], v4, s[44:47], s60 offen sc1', cnt)
        e.vmem('QP1', 'buffer_load_dwordx4 v[20:23], v4, s[44:47], s60 offen offset:1024 sc1', cnt)
    def ev_qchk():
        e('v_bfe_u32 v12, v1, 4, 1'); e('v_lshlrev_b32 v12, 10, v12'); e('v_lshrrev_b32 v13, 5, v1'); e('v_lshl_add_u32 v12, v13, 8, v12')
        e('v_and_b32 v13, 7, v1'); e('v_lshl_add_u32 v12, v13, 4, v12'); e('v_and_b32 v13, 8, v1'); e('v_add_u32 v12, v12, v13')
        e('s_lshl_b32 s60, s10, 11'); e('s_lshl_b32 s71, s9, 7'); e('s_add_u32 s60, s60, s71'); e('s_add_u32 s60, s60, %d' % QIMG)
        e('v_add_u32 v12, s60, v12')
        e.wait('QP1')
        poll_check([19, 23], 'q', lambda: qloads(False))
        e('ds_write_b64 v12, v[16:17]'); e('ds_write_b64 v12, v[20:21] offset:512')
        arrive(1)
        stamp()
    def ev_b1():
        await_(1, lambda: [e('ds_read_b128 v[%d:%d], v4 offset:%d' % (96 + 4 * f, 99 + 4 * f, QIMG + f * 1024)) for f in range(8)])
        stamp()
    def qk_mfma(tau):
        a = 64 + 8 * (tau & 1)
        e.wait('S%d' % (4 * tau + 3))
        for cg in range(4):
            k = 128 + 16 * tau + 4 * cg
            for c in range(2):
                q = 96 + 4 * (2 * cg + c)
                e('v_mfma_f32_16x16x32_bf16 v[%d:%d], v[%d:%d], v[%d:%d], %s' % (a + 4 * c, a + 4 * c + 3, k, k + 3, q, q + 3, ('v[%d:%d]' % (a + 4 * c, a + 4 * c + 3)) if cg else '0'))
    def qk_fin(tau):
        a = 64 + 8 * (tau & 1)
        e('v_add_f32 v%d, v%d, v%d' % (80 + tau, a + 0, a + 5))
        e('v_add_f32 v%d, v%d, v%d' % (88 + tau, a + 2, a + 7))
        if rounds:
            e('v_cvt_pk_bf16_f32 v%d, v%d, v%d' % (88 + tau, 80 + tau, 88 + tau))
            e('v_lshlrev_b32 v%d, 16, v%d' % (80 + tau, 88 + tau)); e('v_and_b32 v%d, 0xffff0000, v%d' % (88 + tau, 88 + tau))
        if tau == 0: e('v_max_f32 v15, v80, v88')
        else: e('v_max3_f32 v15, v15, v%d, v%d' % (80 + tau, 88 + tau))
    def ev_tile(tau):
        def f():
            qk_mfma(tau)
            if tau: qk_fin(tau - 1)
        return f
    def ev_max():
        qk_mfma(7); qk_fin(6)
        e('v_and_b32 v12, 15, v1'); e('v_lshlrev_b32 v12, 5, v12'); e('s_lshl_b32 s60, s55, 2'); e('s_add_u32 s60, s60, %d' % MX)
        e('v_add_u32 v13, s60, v12'); e('v_add_u32 v12, %d, v12' % MX)
        qk_fin(7)
        e('v_mov_b32 v14, v15'); e('v_permlane32_swap_b32 v14, v15'); e('v_max_f32 v15, v14, v15')
        e('v_mov_b32 v14, v15'); e('v_permlane16_swap_b32 v14, v15'); e('v_max_f32 v15, v14, v15')
        e('ds_write_b32 v13, v15')
        arrive(2)
    def ev_soft():
        e('s_lshl_b32 s60, s55, 11'); e('s_add_u32 s60, s60, %d' % PIMG); e('v_add_u32 v13, s60, v4')
        await_(2, lambda: (e('ds_read_b128 v[64:67], v12'), e('ds_read_b128 v[68:71], v12 offset:16')))
        e('v_max3_f32 v15, v64, v65, v66'); e('v_max3_f32 v14, v67, v68, v69'); e('v_max3_f32 v15, v15, v70, v71'); e('v_max_f32 v15, v14, v15')
        e('v_mul_f32 v120, s57, v15')
        for i in range(16): e('v_fma_f32 v%d, v%d, s57, -v120' % (80 + i, 80 + i))
        for i in range(16): e('v_exp_f32 v%d, v%d' % (80 + i, 80 + i))
        for u in range(2):
            for t in range(4): e('v_cvt_pk_bf16_f32 v%d, v%d, v%d' % (16 + 4 * u + t, 80 + 8 * u + 2 * t, 81 + 8 * u + 2 * t))
        e('ds_write_b128 v13, v[16:19]'); e('ds_write_b128 v13, v[20:23] offset:1024')
        if s_clean: e.wait('CL0')
        arrive(3)
        stamp()
    def ev_b2p():
        e('s_lshl_b32 s60, s9, 13'); e('s_add_u32 s60, s60, %d' % PIMG); e('v_add_u32 v12, s60, v4')
        await_(3, lambda: [e('ds_read_b128 v[%d:%d], v%d offset:%d' % (80 + 8 * b_ + 4 * h, 83 + 8 * b_ + 4 * h, 12, b_ * 2048 + h * 1024)) for b_ in range(4) for h in range(2)])
        e('s_mov_b32 s17, 0x40000000')
        e('s_cmp_lg_u32 s10, 0'); e('s_cbranch_scc1 L_nost')
        for i in range(4): e('v_mov_b32 v%d, 0x3f803f80' % (12 + i))
        for f in range(8):
            e('v_mfma_f32_16x16x32_bf16 v[8:11], v[12:15], v[%d:%d], %s' % (80 + 4 * f, 83 + 4 * f, 'v[8:11]' if f else '0'))
        e('s_lshl_b32 s60, s11, 9'); e('s_lshl_b32 s71, s9, 8'); e('s_add_u32 s60, s60, s71'); e('s_add_u32 s17, s60, %d' % SOFF)
        e('v_mov_b32 v8, v120'); e('v_mov_b32 v11, s56')
        e('L_nost:')
        e('s_mov_b64 exec, 0xffff')
        xstore('SST', ['buffer_store_dwordx4 v[8:11], v4, s[40:43], s17 offen'])
        e('s_mov_b64 exec, -1')
        stamp()
    def sloads(cnt=False):
        e('s_lshl_b32 s60, s52, 11'); e('s_add_u32 s60, s60, %d' % SOFF)
        e('s_cmp_eq_u32 s55, 7'); e('s_cselect_b32 s60, s60, 0x40000000')
        e.vmem('SP0', 'buffer_load_dwordx4 v[8:11], v4, s[40:43], s60 offen sc1', cnt)
        if s_clean:
            e('s_xor_b32 s71, s5, 1'); e('s_lshl_b32 s71, s71, 21'); e('s_add_u32 s71, s71, s60'); e('v_and_b32 v127, 7, v1'); e('v_lshlrev_b32 v127, 8, v127')
            e.vmem('SP2', 'buffer_load_dword v127, v127, s[44:47], s71 offen offset:12 sc1', cnt)
        e.vmem('SP1', 'buffer_load_dwordx4 v[12:15], v4, s[40:43], s60 offen offset:1024 sc1', cnt)
    def ev_spoll():
        sloads(True)
    def ev_schk():
        e.wait('SP1')
        e('s_cmp_lg_u32 s55, 7'); e('s_cbranch_scc1 L_nosc')
        poll_check([11, 15] + ([127] if s_clean else []), 's', sloads)
        e('v_max_f32 v10, v8, v12')
        e('v_mov_b32 v11, v10'); e('v_permlane32_swap_b32 v11, v10'); e('v_max_f32 v10, v10, v11')
        e('v_mov_b32 v11, v10'); e('v_permlane16_swap_b32 v11, v10'); e('v_max_f32 v10, v10, v11')
        e('v_sub_f32 v8, v8, v10'); e('v_sub_f32 v12, v12, v10'); e('v_sub_f32 v14, v120, v10')
        e('v_exp_f32 v8, v8'); e('v_exp_f32 v12, v12'); e('v_exp_f32 v14, v14')
        e('v_mul_f32 v9, v8, v9'); e('v_fmac_f32 v9, v12, v13')
        e('v_mov_b32 v11, v9'); e('v_permlane32_swap_b32 v11, v9'); e('v_add_f32 v9, v9, v11')
        e('v_mov_b32 v11, v9'); e('v_permlane16_swap_b32 v11, v9'); e('v_add_f32 v9, v9, v11')
        e('v_rcp_f32 v9, v9')
        e('v_and_b32 v8, 15, v1'); e('v_lshlrev_b32 v8, 2, v8'); e('v_add_u32 v8, %d, v8' % AL)
        e('v_mul_f32 v9, v9, v14')
        e('ds_write_b32 v8, v9')
        e('L_nosc:')
        stamp()
    def pv(beta):
        vb = 128 + 32 * beta
        e.wait('S%d' % (32 + 8 * beta + 7))
        for j in range(8):
            p, hi = j >> 1, j & 1
            f = 112 + 4 * (j & 1)
            for t in range(4):
                e('v_perm_b32 v%d, v%d, v%d, s%d' % (f + t, vb + 4 * (2 * t + 1) + p, vb + 4 * (2 * t) + p, 59 if hi else 58))
            for h in range(2):
                a = 16 + 8 * j + 4 * h
                b_ = 80 + 8 * beta + 4 * h
                e('v_mfma_f32_16x16x32_bf16 v[%d:%d], v[%d:%d], v[%d:%d], %s' % (a, a + 3, f, f + 3, b_, b_ + 3, ('v[%d:%d]' % (a, a + 3)) if beta else '0'))
    def ev_wo(n):
        def f():
            e('s_add_u32 m0, s4, %d' % (n * 1024))
            e('s_add_u32 s60, s6, %d' % (8 * n * 896 + (0x20000000 if skipwo else 0)))
            e.vmem('WO%d' % n, 'buffer_load_dwordx4 v%d, s[36:39], s60 offen %s lds' % (5 + (n & 1), polWo if polWo is not None else polW))
        return f
    def ev_woa():
        e.wait('WO7'); arrive(4)
    def wotr():
        e('s_lshl_b32 s60, s9, 15'); e('s_add_u32 s60, s60, %d' % WOIMG); e('s_lshl_b32 s71, s10, 5')
        e('v_xor_b32 v10, s71, v126'); e('v_add_u32 v10, s60, v10')
        def rd():
            for ks in range(8):
                r = 128 + 4 * ks
                e('ds_read_b64_tr_b16 v[%d:%d], v10 offset:%d' % (r, r + 1, ks * 4096))
                e('ds_read_b64_tr_b16 v[%d:%d], v10 offset:%d' % (r + 2, r + 3, ks * 4096 + 512))
        return rd
    def ev_paddr():
        e('s_lshl_b32 s15, s52, 1'); e('s_and_b32 s60, s53, 1'); e('s_add_u32 s15, s15, s60')
        e('s_lshl_b32 s7, s15, 9')
        e('s_lshl_b32 s15, s15, 14'); e('s_and_b32 s60, s55, 2'); e('s_lshl_b32 s60, s60, 12'); e('s_add_u32 s15, s15, s60')
        e('s_and_b32 s60, s55, 1'); e('s_lshl_b32 s60, s60, 10'); e('s_add_u32 s15, s15, s60')
        e('s_lshl_b32 s60, s9, 21'); e('s_add_u32 s15, s15, s60'); e('s_add_u32 s15, s15, %d' % HOFF); e('s_add_u32 s20, s15, 4096')
        e('s_lshr_b32 s60, s53, 1'); e('s_lshl_b32 s60, s60, 3'); e('s_add_u32 s60, s60, s55'); e('s_lshl_b32 s60, s60, 14'); e('s_add_u32 s7, s7, s60'); e('s_add_u32 s7, s7, %d' % OOFF)

        if fin2: e('s_lshl_b32 s8, s11, 7'); e('s_add_u32 s8, s8, s55'); e('s_lshl_b32 s8, s8, 6'); e('s_add_u32 s8, s8, %d' % OOFF)
        else: e('s_lshl_b32 s8, s11, 3'); e('s_add_u32 s8, s8, s55'); e('s_lshl_b32 s8, s8, 10'); e('s_add_u32 s8, s8, %d' % OOFF)
        e('v_mov_b32 v126, v7')
    def ev_pre1():
        e('v_and_b32 v125, 7, v1'); e('v_lshlrev_b32 v125, 7, v125')
        e.vmem('PRE1', 'buffer_load_dword v127, v125, s[40:43], s14 offen %s' % polP1)
    def ev_wotr():
        if not wo_late: await_(4, wotr())
        e('v_lshrrev_b32 v13, 4, v1')
        e('s_lshl_b32 s60, s55, 11'); e('s_add_u32 s71, s60, %d' % XCH); e('v_add_u32 v2, s71, v4')
        e('s_xor_b32 s60, s60, 0x2000'); e('s_add_u32 s71, s60, %d' % XCH); e('v_add_u32 v196, s71, v4')
        e('v_and_b32 v14, 15, v1'); e('v_lshlrev_b32 v121, 2, v14'); e('v_add_u32 v121, %d, v121' % AL)
        e('v_mul_u32_u24 v12, %d, v14' % OBS)
        e('v_lshl_add_u32 v7, v13, 4, v12'); e('v_add_u32 v7, %d, v7' % OB)
        e('v_and_b32 v12, 7, v1'); e('v_mul_u32_u24 v12, %d, v12' % OBS)
        e('v_lshl_add_u32 v197, v13, 5, v12'); e('v_and_b32 v12, 8, v1'); e('v_lshl_add_u32 v197, v12, 5, v197')
        e('s_mul_i32 s60, s9, %d' % (8 * OBS)); e('s_and_b32 s71, s55, 2'); e('s_lshl_b32 s71, s71, 6'); e('s_add_u32 s60, s60, s71')
        e('s_and_b32 s71, s55, 1'); e('s_lshl_b32 s71, s71, 4'); e('s_add_u32 s60, s60, s71'); e('s_add_u32 s60, s60, %d' % OB)
        e('v_add_u32 v197, s60, v197')
        e('v_lshrrev_b32 v12, 5, v1'); e('v_and_b32 v0, 0x1f0, v4'); e('v_lshl_add_u32 v0, v12, 13, v0')
        for k in range(4): e('s_bfe_u32 s60, s56, 0x%x' % ((8 << 16) | (8 * k))); e('v_mov_b32 v%d, s60' % (192 + k))
        e('s_mov_b32 s65, 0xffffff00'); e('s_mov_b32 s67, 0x0c0c0400'); e('s_mov_b32 s63, 0x3f80'); e('s_mov_b32 s64, 0x3f800000')
        if qwb:
            e('s_lshl_b32 s21, s52, 3'); e('s_add_u32 s21, s21, s1'); e('s_lshl_b32 s21, s21, 12'); e('s_lshl_b32 s71, s55, 9'); e('s_add_u32 s21, s21, s71'); e('s_add_u32 s21, s21, %d' % QOFF)
            for i in range(4): e('v_mov_b32 v%d, s56' % (204 + i))
        e('s_lshr_b32 s60, s61, 1'); e('s_lshl_b32 s60, s60, 3'); e('s_add_u32 s60, s60, s55'); e('s_cmp_lt_u32 s60, 28'); e('s_cselect_b32 s12, 1, 0')
        e('s_lshl_b32 s60, s5, 5'); e('s_add_u32 s60, s60, s11'); e('s_cmp_lt_u32 s60, 56'); e('s_cselect_b32 s13, 1, 0')
        e('s_lshl_b32 s60, s60, 4'); e('s_lshr_b32 s61, s54, 1'); e('s_mul_i32 s61, s61, 14336'); e('s_add_u32 s61, s61, s60')
        if fin2:
            e('v_lshrrev_b32 v198, 2, v1'); e('v_and_b32 v15, 3, v1'); e('v_lshlrev_b32 v198, 9, v198'); e('v_lshl_add_u32 v198, v15, 4, v198')
            e('v_mul_u32_u24 v200, 896, v15'); e('v_lshl_add_u32 v200, v12, 2, v200')
            e('s_mul_i32 s60, s10, %d' % (4 * 896)); e('s_add_u32 s61, s61, s60'); e('s_lshl_b32 s60, s9, 3'); e('s_add_u32 s61, s61, s60')
        else:
            e('v_mul_u32_u24 v200, 896, v14'); e('v_lshl_add_u32 v200, v12, 2, v200'); e('v_bfe_u32 v15, v1, 4, 1'); e('v_lshl_add_u32 v200, v15, 3, v200')
            e('s_lshl_b32 s60, s55, 9'); e('s_add_u32 s60, s60, %d' % FIN); e('v_lshlrev_b32 v199, 3, v1'); e('v_add_u32 v198, s60, v199'); e('v_add_u32 v199, %d, v199' % FIN)
    nstmax = 2 + len(st_slots) if (st_slots is not None and not tailst) else 14
    def ev_probe(kind):
        def f():
            if kind == 's':
                e('v_and_b32 v127, 3, v1'); e('v_lshlrev_b32 v127, 9, v127'); e('v_bfe_u32 v125, v1, 2, 1'); e('v_lshl_add_u32 v127, v125, 21, v127')
                e('s_lshl_b32 s60, s52, 11'); e('s_add_u32 s60, s60, %d' % SOFF)
                e.vmem('PBs', 'buffer_load_dword v127, v127, s[44:47], s60 offen offset:12 sc1')
            else:
                e('v_and_b32 v11, 7, v1'); e('v_lshlrev_b32 v11, 12, v11')
                e('s_lshl_b32 s60, s52, 15'); e('s_add_u32 s60, s60, %d' % QOFF)
                e.vmem('PBq', 'buffer_load_dword v0, v11, s[44:47], s60 offen offset:12 sc1')
        return f
    def ev_probed(kind, slot, per, ign):
        def f():
            e.wait('PB' + kind)
            e('v_cmp_eq_u32 vcc, s56, v%d' % (127 if kind == 's' else 0)); e('s_and_b32 s60, vcc_lo, 0xff'); e('s_bcnt1_i32_b32 s60, s60')
            e('s_sub_i32 s60, s60, %d' % ign); e('s_max_i32 s60, s60, 0'); e('s_mul_i32 s60, s60, %d' % per); e('s_add_u32 s97, s60, %d' % (slot + 1))
        return f
    ev = {}
    s_max = max(31 + D, s_tiles[-1] + 1)
    def at(slot, f): ev.setdefault(slot, []).append(f)
    for i in range(9):
        if s_wq[i] >= D0: at(s_wq[i], ev_wq(i))
    at(s_xi, ev_xi); at(s_xi + D + 1, ev_xc); at(s_clean or s_xi + D + 1, ev_clean); assert s_xi + D + 1 < (s_qproj if s_clean else s_b0)
    if s_xi2: at(s_xi2, ev_xi); at(s_xi2 + D + 2, ev_xc); assert s_max + 1 < s_xi2 and s_xi2 + D + 2 < 40
    at(s_b0, ev_b0); at(s_qproj if split else s_b0, ev_qproj); at(s_qpoll, qloads); at(s_qchk, ev_qchk); at(s_b1, ev_b1)
    for tau, sl in enumerate(s_tiles):
        if not nocomp: at(sl, ev_tile(tau))
    s_max = max(31 + D, s_tiles[-1] + 1)
    s_soft = s_soft or s_max + 1
    at(s_max, ev_max); at(s_soft, ev_soft); at(s_b2p, ev_b2p)
    assert s_b2p > s_soft > s_max
    for tau, sl in enumerate(s_tiles): assert sl < 32 + 4 * tau
    at(s_spoll, ev_spoll); at(s_spoll + D + 1, ev_schk)
    (at(max(39 + D, s_b2p + 1), lambda: pv(0)), at(47 + D, lambda: pv(1)), at(55 + D, lambda: pv(2))) if not nocomp else None
    if s_pre1: at(s_pre1, ev_pre1)
    for n in range(8): at(s_wo[n], ev_wo(n))
    if not wo_late:
        at(s_woa, ev_woa); assert s_wo[7] < s_woa < s_wotr and not (s_spoll <= s_woa <= s_spoll + D + 1)
    assert s_wotr > 55 + D and list(s_wo) == sorted(s_wo) and s_spoll + D + 1 < s_wotr and s_spoll > s_b2p
    at(s_wotr, ev_wotr)
    at(40, ev_paddr)
    fbr = set()
    if fb:
        assert not stamps or nstmax <= 12
        assert fb[0] > s_max and fb[0] + D + 1 < s_spoll
        at(fb[0], ev_probe('s')); at(fb[0] + D, ev_probed('s', fb[0] + D, fb[1], fb[2])); fbr |= set(range(fb[0] + D + 1, 64))
    if fbq:
        assert fbq[0] < s_qproj
        at(fbq[0], ev_probe('q')); at(fbq[0] + D, ev_probed('q', fbq[0] + D, fbq[1], fbq[2])); fbr |= set(range(fbq[0] + D + 1, (fb[0] + D + 1) if fb else 64))
    def ev_outpre():
        e('s_mul_i32 s60, s54, 7168')
        e.vmem('OUTP', 'buffer_load_dword v127, v122, s[48:51], s60 offen')
    if outpre: at(outpre, lambda: (e('v_mov_b32 v122, 0'), ev_outpre()))
    for n in range(D0, 64):
        d = dep.get(n, D)
        e('; ---- slot %d' % n)
        m = (1 if n in boostA else 0) | (2 if n in boostB else 0) | (4 if n in boostC else 0)
        if (m or n in fbr) and n - d - 1 >= 0:
            e.wait('S%d' % (n - d - 1))
            if m: e('s_and_b32 s60, s101, %d' % m); e('s_cbranch_scc1 L_bo%d' % n)
            if n in fbr: e('s_cmp_gt_u32 s97, %d' % n); e('s_cbranch_scc1 L_bo%d' % n)
            e.wait('S%d' % (n - d))
            e('L_bo%d:' % n)
        elif n - d >= 0: e.wait('S%d' % (n - d))
        if st_slots and n in st_slots: stamp(True)
        if n < 32: kload(n)
        else: vload(n - 32)
        for f in ev.get(n, []): f()
    stamp(tailst)
    def hint_store():
        e('buffer_store_dword v203, v204, s[44:47], s69 offen sc1')
    def qwb_store():
        e('s_mov_b32 exec_hi, 0')
        e('buffer_store_dwordx4 v[204:207], v4, s[44:47], s21 offen sc1')
        e('s_mov_b32 exec_hi, -1')
    pv(3)
    if tailst: stamp(True)
    for j in range(8): e('v_add_f32 v%d, v%d, v%d' % (88 + j, 16 + 8 * j + 2, 16 + 8 * j + 7))
    e('ds_write_b128 v2, v[88:91]'); e('ds_write_b128 v2, v[92:95] offset:1024')
    for j in range(8): e('v_add_f32 v%d, v%d, v%d' % (80 + j, 16 + 8 * j, 16 + 8 * j + 5))
    if wo_late and not wosplit: e.wait('WO7')
    e('s_waitcnt lgkmcnt(0)'); e('s_barrier')
    e('ds_read_b128 v[96:99], v196'); e('ds_read_b128 v[100:103], v196 offset:1024'); e('ds_read_b32 v104, v121')
    e('s_waitcnt lgkmcnt(0)')
    if pkx:
        for j in range(0, 8, 2): e('v_pk_add_f32 v[%d:%d], v[%d:%d], v[%d:%d]' % (80 + j, 81 + j, 80 + j, 81 + j, 96 + j, 97 + j))
        for j in range(0, 8, 2): e('v_pk_mul_f32 v[%d:%d], v[%d:%d], v[104:105] op_sel_hi:[1,0]' % (80 + j, 81 + j, 80 + j, 81 + j))
    else:
        for j in range(8): e('v_add_f32 v%d, v%d, v%d' % (80 + j, 80 + j, 96 + j))
        for j in range(8): e('v_mul_f32 v%d, v104, v%d' % (80 + j, 80 + j))
    for j in range(4): e('v_cvt_pk_bf16_f32 v%d, v%d, v%d' % (88 + j, 80 + 2 * j, 81 + 2 * j))
    e('v_min_u32 v91, -2, v91')
    xstore('HS', ['buffer_store_dwordx4 v[88:91], v4, s[40:43], s14 offen'])
    stamp(tailst)
    if wo_late and not wosplit: wotr()()
    if drain1: e('s_waitcnt vmcnt(0)')
    stamp(tailst)
    HA = (('s15', 0), ('s15', 2048), ('s20', 0), ('s20', 2048))
    def hload(p): e('buffer_load_dwordx4 v[%d:%d], v4, s[44:47], %s offen offset:%d sc1' % (16 + 4 * p, 19 + 4 * p, HA[p][0], HA[p][1]))
    def hloads():
        for p in range(4): hload(p)
    hloads()
    if wo_late and wosplit:
        assert drain1
        arrive(4); await_(4, wotr())
    e('s_waitcnt vmcnt(0)')
    if tailst: stamp(True)
    e('L_chk_h:')
    e('v_max_u32 v8, v19, v23'); e('v_max3_u32 v8, v8, v27, v31')
    e('v_cmp_eq_u32 vcc, -1, v8'); e('s_cbranch_vccnz L_retry_h')
    def hretry():
        for p in range(4):
            e('v_cmp_eq_u32 vcc, -1, v%d' % (19 + 4 * p)); e('s_cbranch_vccz L_hs%d' % p)
            hload(p)
            e('L_hs%d:' % p)
    retry.append(('h', hretry if mretry else hloads))
    stamp(tailst)
    if qwb == 1: qwb_store()
    for k in range(4):
        t = 32 + 8 * k
        for p in range(4):
            e('v_lshlrev_b32 v%d, 16, v%d' % (t + 2 * p, 16 + 4 * p + k)); e('v_and_b32 v%d, 0xffff0000, v%d' % (t + 2 * p + 1, 16 + 4 * p + k))
        e('v_pk_add_f32 v[%d:%d], v[%d:%d], v[%d:%d]' % (t, t + 1, t, t + 1, t + 2, t + 3))
        e('v_pk_add_f32 v[%d:%d], v[%d:%d], v[%d:%d]' % (t + 4, t + 5, t + 4, t + 5, t + 6, t + 7))
        e('v_pk_add_f32 v[%d:%d], v[%d:%d], v[%d:%d]' % (t, t + 1, t, t + 1, t + 4, t + 5))
        e('v_cvt_pk_bf16_f32 v%d, v%d, v%d' % (64 + k, t, t + 1))
    e('ds_write_b128 v197, v[64:67]')
    e('s_waitcnt lgkmcnt(0)'); e('s_barrier')
    e('s_cmp_eq_u32 s12, 0'); e('s_cbranch_scc1 L_nopub')
    for ks in range(8): e('ds_read_b128 v[%d:%d], v7 offset:%d' % (16 + 4 * ks, 19 + 4 * ks, ks * 64))
    for ks in range(8):
        e('s_waitcnt lgkmcnt(%d)' % (0 if stamps else 7 - ks))
        r = 128 + 4 * ks
        e('v_mfma_f32_16x16x32_bf16 v[48:51], v[%d:%d], v[%d:%d], %s' % (r, r + 3, 16 + 4 * ks, 19 + 4 * ks, 'v[48:51]' if ks else '0'))
    for v in range(4): e('v_and_or_b32 v%d, v%d, s65, v%d' % (48 + v, 48 + v, 192 + v))
    e('buffer_store_dwordx4 v[48:51], v0, s[40:43], s7 offen %s' % polOS)
    e('L_nopub:')
    stamp(tailst)
    if drain2: e('s_waitcnt vmcnt(0)')
    if tailst: stamp(True)
    e('s_cmp_eq_u32 s13, 0'); e('s_cbranch_scc1 L_fin')
    def oloads():
        e('buffer_load_dwordx4 v[80:83], %s, s[40:43], s8 offen %s' % ('v198' if fin2 else 'v4', polOL))
    if odelay: e('s_sleep %d' % odelay)
    oloads()
    e('s_waitcnt vmcnt(0)')
    if tailst: stamp(True)
    e('L_chk_o:')
    e('v_perm_b32 v8, v81, v80, s67'); e('v_perm_b32 v9, v83, v82, s67'); e('v_lshl_or_b32 v8, v9, 16, v8')
    e('v_cmp_ne_u32 vcc, s56, v8'); e('s_cbranch_vccnz L_retry_o')
    def oretry():
        e('s_mov_b64 exec, vcc'); oloads(); e('s_mov_b64 exec, -1')
    retry.append(('o', oretry if mretry2 else oloads))
    if tailst: stamp(True)
    for r in range(4): e('v_and_b32 v%d, s65, v%d' % (80 + r, 80 + r))
    e('v_permlane32_swap_b32 v80, v82'); e('v_permlane32_swap_b32 v81, v83')
    e('v_add_f32 v16, v80, v82'); e('v_add_f32 v17, v81, v83')
    if fin2:
        e('v_mov_b32 v18, v16'); e('v_mov_b32 v19, v17')
        e('v_permlane16_swap_b32 v18, v16'); e('v_permlane16_swap_b32 v19, v17')
        e('v_add_f32 v16, v16, v18'); e('v_add_f32 v17, v17, v19')
        e('v_add_f32_dpp v16, v16, v16 row_ror:8 row_mask:0xf bank_mask:0xf'); e('v_add_f32_dpp v17, v17, v17 row_ror:8 row_mask:0xf bank_mask:0xf')
        e('v_add_f32_dpp v16, v16, v16 row_ror:4 row_mask:0xf bank_mask:0xf'); e('v_add_f32_dpp v17, v17, v17 row_ror:4 row_mask:0xf bank_mask:0xf')
        e('v_cvt_pk_bf16_f32 v16, v16, v17')
        e('s_mov_b32 exec_lo, 15'); e('s_mov_b32 exec_hi, 15')
        e('buffer_store_dword v16, v200, s[48:51], s61 offen')
        e('s_mov_b64 exec, -1')
        e('s_cmp_lg_u32 s55, 0'); e('s_cbranch_scc1 L_fin')
    else:
        e('ds_write_b64 v198, v[16:17]')
        e('s_waitcnt lgkmcnt(0)'); e('s_barrier')
        e('s_cmp_lg_u32 s55, 0'); e('s_cbranch_scc1 L_fin')
        for w in range(8): e('ds_read_b64 v[%d:%d], v199 offset:%d' % (16 + 2 * w, 17 + 2 * w, w * 512))
        e('s_waitcnt lgkmcnt(0)')
        for (a, b_) in ((16, 18), (20, 22), (24, 26), (28, 30), (16, 20), (24, 28), (16, 24)):
            e('v_add_f32 v%d, v%d, v%d' % (a, a, b_)); e('v_add_f32 v%d, v%d, v%d' % (a + 1, a + 1, b_ + 1))
        e('v_cvt_pk_bf16_f32 v16, v16, v17')
        e('buffer_store_dword v16, v200, s[48:51], s61 offen')
    e('s_and_b32 s60, s2, 63'); e('s_cmp_lg_u32 s60, 0'); e('s_cbranch_scc1 L_fin')
    e('v_mov_b32 v9, s56'); e('v_mov_b32 v8, %d' % EOFF)
    e('s_mov_b64 exec, 1')
    e('buffer_store_dword v9, v8, s[44:47], 0 offen sc1')
    e('s_mov_b64 exec, -1')
    e('L_fin:')
    if stamps:
        stamp(True)
        e('s_waitcnt lgkmcnt(0)')
        if amp:
            last = 72 + 2 * (nst[0] - 1)
            a0 = 72 + 2 * amp[0]; a1 = 72 + 2 * (amp[1] if amp[1] >= 0 else nst[0] - 1)
            e('s_cmp_lg_u32 s2, %d' % amp_wg); e('s_cbranch_scc1 L_noamp')
            e('s_cmp_lg_u32 s55, 0'); e('s_cbranch_scc1 L_noamp')
            e('s_sub_u32 s60, s%d, s%d' % (a1, a0)); e('s_mul_i32 s60, s60, %d' % amp_f); e('s_min_u32 s60, s60, 100000')
            e('L_amp:')
            e('s_memrealtime s[62:63]'); e('s_waitcnt lgkmcnt(0)'); e('s_sub_u32 s64, s62, s%d' % last); e('s_cmp_lt_u32 s64, s60'); e('s_cbranch_scc1 L_amp')
            e('L_noamp:')
            e('s_endpgm')
        e('s_lshl_b32 s60, s2, 3'); e('s_add_u32 s60, s60, s55'); e('s_lshl_b32 s60, s60, 7')
        e('s_add_u32 s18, s18, 0x20000000'); e('s_addc_u32 s19, s19, 0')
        e('v_mov_b32 v8, s60')
        e('s_getreg_b32 s60, hwreg(HW_REG_XCC_ID)')
        for i in range(28): e('v_mov_b32 v%d, s%d' % (16 + i, 72 + i) if 72 + i < 72 + 2 * nst[0] else 'v_mov_b32 v%d, 0' % (16 + i))
        e('v_mov_b32 v44, s100'); e('v_mov_b32 v45, s3'); e('v_mov_b32 v46, s60'); e('v_mov_b32 v47, s0')
        e('s_mov_b64 exec, 1')
        for i in range(8): e('global_store_dwordx4 v8, v[%d:%d], s[18:19] offset:%d' % (16 + 4 * i, 19 + 4 * i, 16 * i))
    e('s_endpgm')
    for k, (name, loads) in enumerate(retry):
        e('L_retry_%s:' % name)
        if stamps: e('s_add_u32 s100, s100, %d' % (1 << (8 * k)))
        e('s_sub_u32 s3, s3, 1'); e('s_cbranch_scc1 L_fin')
        sl_ = osleep if name in 'oh' else sleep
        if sl_: e('s_sleep %d' % sl_)
        loads()
        e('s_waitcnt vmcnt(0)')
        e('s_branch L_chk_%s' % name)
    for k, texts in enumerate(far):
        e('L_far%d:' % k)
        for t in texts: e(t + ' sc1')
        e('s_branch L_near%d' % k)
    e('L_end:')
    e('s_endpgm')
    tail = ['.section .rodata,"a"', '.p2align 6', '.amdhsa_kernel ' + KN,
            '  .amdhsa_next_free_vgpr 256', '  .amdhsa_next_free_sgpr 102', '  .amdhsa_accum_offset 256',
            '  .amdhsa_group_segment_fixed_size 0', '  .amdhsa_kernarg_size 64', '  .amdhsa_user_sgpr_count 2',
            '  .amdhsa_user_sgpr_kernarg_segment_ptr 1', '  .amdhsa_system_sgpr_workgroup_id_x 1',
            '  .amdhsa_float_denorm_mode_32 3', '  .amdhsa_float_denorm_mode_16_64 3', '.end_amdhsa_kernel']
    txt = e.text()
    if stamps: txt = txt.replace('    s_mov_b32 s3, 0x40000\n', '    s_mov_b32 s3, 0x40000\n    s_mov_b32 s100, 0\n    s_mov_b32 s0, 0\n')
    return '\n'.join(hdr) + '\n' + txt + '\n'.join(tail) + '\n'

if __name__ == '__main__':
    cfgs = eval(open(sys.argv[1]).read())
    for n, c in cfgs.items():
        open(n + '.s', 'w').write(gen(**c))
    print(' '.join(n + '.s' for n in cfgs))
```
